```python
import torch

def _softmax(x, axis=-1):
    return torch.softmax(x, dim=axis)
def _gelu(x):
    return torch.nn.functional.gelu(x, approximate="tanh")
def _silu(x):
    return torch.nn.functional.silu(x)
def _sigmoid(x):
    return torch.sigmoid(x)
def _layernorm(x, axis=-1, eps=1e-5):
    m = x.mean(dim=axis, keepdim=True)
    v = x.var(dim=axis, keepdim=True, unbiased=False)
    return (x - m) / torch.sqrt(v + eps)
def _scatter_add(tgt, idx, src, axis=0):
    return tgt.clone().index_add_(axis, idx, src)
def _segment_sum(src, seg, n):
    out = torch.zeros((n,) + src.shape[1:], dtype=src.dtype)
    return out.index_add_(0, seg, src)
def _pad(x, pw):
    flat = tuple(v for pair in reversed(pw) for v in pair)
    return torch.nn.functional.pad(x, flat)

kernel_name = 'standalone__controlnet__diffusion'

def setup_inputs():

    _w = (lambda a: (lambda t: t.to(torch.bfloat16) if t.is_floating_point() else t)(torch.as_tensor(a)))
    B, HW, C = 2, 64, 512
    sc = C ** -0.5
    return {
        "x_frozen": _w((lambda *s: torch.randn(*s, dtype=torch.bfloat16) * 0.1)(B, HW, HW, C)),
        "x": _w((lambda *s: torch.randn(*s, dtype=torch.bfloat16) * 0.2)(B, HW, HW, C)),
        "c": _w((lambda *s: torch.randn(*s, dtype=torch.bfloat16) * 0.8)(B, HW, HW, C)),
        "w_z1": _w((lambda *s: torch.randn(*s, dtype=torch.bfloat16) * 0.8)(C, C) * sc),
        "w_z2": _w((lambda *s: torch.randn(*s, dtype=torch.bfloat16) * 0.2)(C, C) * sc),
        "w_conv": _w((lambda *s: torch.randn(*s, dtype=torch.bfloat16) * 0.2)(3, 3, C, C) * sc / 3.0),
    }

def reference(x_frozen, x, c, w_z1, w_z2, w_conv):
    B, H, W, C = x.shape
    h_in = x + torch.einsum("bhwc,cd->bhwd", c, w_z1)
    h = _silu(_layernorm(h_in, axis=-1))
    hp = _pad(h, ((0, 0), (1, 1), (1, 1), (0, 0)))
    acc = h * 0.0
    for di in range(3):
        for dj in range(3):
            acc = acc + torch.einsum("bhwc,cd->bhwd", hp[:, di:di + H, dj:dj + W, :], w_conv[di, dj])
    h = h_in + acc
    return x_frozen + torch.einsum("bhwc,cd->bhwd", h, w_z2)
```

```python
class Asm:
    def __init__(self):
        self.lines = []
    def __call__(self, s=""):
        for l in s.split("\n"):
            self.lines.append("    " + l.strip() if l.strip() and not l.strip().endswith(":") else l.strip())
    def label(self, n): self.lines.append(n + ":")
    def raw(self, s): self.lines.append(s)
    def text(self): return "\n".join(self.lines) + "\n"

HEADER = """; Kernarg layout for this problem (72 bytes, ptrs only, base s[0:1]):
"""

def kernel_begin(a, name):
    a.raw(".text"); a.raw(f".globl {name}"); a.raw(".p2align 8"); a.raw(f".type {name},@function"); a.raw(f"{name}:")

def kernel_desc(a, name, nvgpr, accum, nsgpr=102):
    a.raw('.section .rodata,"a"'); a.raw(".p2align 6")
    a.raw(f".amdhsa_kernel {name}")
    a.raw(f"  .amdhsa_next_free_vgpr {nvgpr}")
    a.raw(f"  .amdhsa_next_free_sgpr {nsgpr}")
    a.raw(f"  .amdhsa_accum_offset {accum}")
    a.raw("  .amdhsa_group_segment_fixed_size 0")
    a.raw("  .amdhsa_kernarg_size 72")
    a.raw("  .amdhsa_user_sgpr_count 2")
    a.raw("  .amdhsa_user_sgpr_kernarg_segment_ptr 1")
    a.raw("  .amdhsa_system_sgpr_workgroup_id_x 1")
    a.raw("  .amdhsa_float_denorm_mode_32 3")
    a.raw(".end_amdhsa_kernel")

def srd(a, d, b, nbytes):
    a(f"s_mov_b32 s{d}, s{b}")
    a(f"s_and_b32 s{d+1}, s{b+1}, 0xffff")
    a(f"s_mov_b32 s{d+2}, {hex(nbytes)}")
    a(f"s_mov_b32 s{d+3}, 0x00020000")
```

```python
from asmlib import *
from k2gen import Stream, WS_H, WS_HZ, WS_U, USTREAM, WS_SC

S_W = 3
SRD_A = 8; SRD_B = 12; SRD_X = 16; SRD_WS = 20
S_SELLO = 24; S_SELHI = 25

def emit(a, st):
    for l in st.resolve(): a(l)

def gen_rows(a, opt):
    V_W0, V_W1, V_C0, V_C1, V_F0, V_F1, V_X0, V_ST, V_SZ = 1, 2, 3, 4, 5, 6, 7, 8, 9
    V_FR = 16
    V_RAW = 32
    V_ACC = 128
    S_WOFF, S_COFF, S_M0, S_T = 26, 27, 28, 29
    def acc(q, j): return V_ACC + (q * 8 + j) * 4
    a("s_load_dwordx2 s[4:5], s[0:1], 16")
    a("s_load_dwordx2 s[6:7], s[0:1], 24")
    a("s_load_dwordx2 s[30:31], s[0:1], 8")
    a("s_load_dwordx2 s[32:33], s[0:1], 64")
    a("s_lshl_b32 s54, s52, 4"); a("s_add_u32 s54, s54, s53")
    a("s_and_b32 s55, s53, 7")
    a("s_lshl_b32 s56, s54, 16")
    a(f"s_lshl_b32 s57, s{S_W}, 8")
    a("v_lshlrev_b32 v13, 13, v11"); a("v_lshl_add_u32 v13, v12, 4, v13"); a(f"v_add_u32 v{V_W0}, s57, v13"); a(f"v_add_u32 v{V_W1}, 4096, v{V_W0}")
    a(f"s_lshl_b32 s{S_WOFF}, s55, 16")
    a("s_waitcnt lgkmcnt(0)")
    srd(a, SRD_B, 6, 512 * 1024)
    st = Stream()
    def wload(s, k):
        r = V_RAW + (s % 3) * 32 + k * 4
        st.vm(f"buffer_load_dwordx4 v[{r}:{r+3}], v{V_W0 + k // 4}, s[{SRD_B}:{SRD_B+3}], s{S_WOFF} offen offset:{(k % 4) * 1024}", ("W", s))
    def wadv():
        st.ins(f"s_add_u32 s{S_WOFF}, s{S_WOFF}, 0x8000"); st.ins(f"s_and_b32 s{S_WOFF}, s{S_WOFF}, 0x7ffff")
    for k in range(8): wload(0, k)
    wadv()
    b = Asm(); srd(b, SRD_A, 4, 8 << 20)
    for l in b.lines: st.ins(l.strip())
    st.ins("v_lshrrev_b32 v13, 3, v10"); st.ins("v_and_b32 v14, 7, v10"); st.ins("v_xor_b32 v14, v14, v13")
    st.ins("v_lshlrev_b32 v14, 4, v14"); st.ins("v_lshl_add_u32 v14, v13, 11, v14")
    st.ins(f"s_lshr_b32 s57, s{S_W}, 1"); st.ins("s_lshl_b32 s57, s57, 15"); st.ins(f"s_and_b32 s58, s{S_W}, 1"); st.ins("s_lshl_b32 s58, s58, 10")
    st.ins("s_add_u32 s57, s57, s58"); st.ins("s_add_u32 s57, s57, s56")
    st.ins(f"v_add_u32 v{V_C0}, s57, v14"); st.ins(f"v_add_u32 v{V_C1}, 0x4000, v{V_C0}")
    st.ins(f"s_lshl_b32 s{S_COFF}, s55, 7"); st.ins(f"s_lshl_b32 s{S_M0}, s{S_W}, 11")
    def cdma(sp):
        for ph in range(2):
            st.ins(f"s_add_u32 m0, s{S_M0}, {sp * 8192 + ph * 1024}"); st.ins("s_nop 0")
            st.vm(f"buffer_load_dwordx4 v{V_C0 + ph}, s[{SRD_A}:{SRD_A+3}], s{S_COFF} offen lds", ("C", sp))
        st.ins(f"s_add_u32 s{S_COFF}, s{S_COFF}, 128"); st.ins(f"s_and_b32 s{S_COFF}, s{S_COFF}, 0x3ff")
    cdma(0)
    for k in range(8): wload(1, k)
    wadv()
    for sp in range(1, 8): cdma(sp)
    b = Asm(); srd(b, SRD_X, 30, 8 << 20); srd(b, SRD_WS, 32, 0x10000000)
    for l in b.lines: st.ins(l.strip())
    st.ins("v_and_b32 v13, 7, v12"); st.ins("v_xor_b32 v14, v11, v13"); st.ins("v_lshlrev_b32 v14, 4, v14"); st.ins(f"v_lshl_add_u32 v{V_F0}, v12, 7, v14")
    st.ins(f"v_xor_b32 v{V_F1}, 64, v{V_F0}")
    st.ins(f"s_lshl_b32 s57, s{S_W}, 8"); st.ins("s_add_u32 s57, s57, s56")
    st.ins("v_lshlrev_b32 v13, 11, v12"); st.ins("v_lshl_add_u32 v13, v11, 6, v13"); st.ins(f"v_add_u32 v{V_X0}, s57, v13")
    st.ins(f"s_lshl_b32 s57, s{S_W}, 14"); st.ins("s_add_u32 s57, s57, s56")
    st.ins("v_lshlrev_b32 v13, 12, v11"); st.ins("v_lshl_add_u32 v13, v12, 4, v13"); st.ins(f"v_add_u32 v{V_ST}, s57, v13")
    st.ins(f"s_lshr_b32 s57, s{S_W}, 1"); st.ins("s_lshl_b32 s57, s57, 15"); st.ins(f"s_and_b32 s58, s{S_W}, 1"); st.ins("s_lshl_b32 s58, s58, 12")
    st.ins("s_add_u32 s57, s57, s58"); st.ins("s_add_u32 s57, s57, s56"); st.ins(f"s_add_u32 s57, s57, {WS_HZ}")
    st.ins("v_lshlrev_b32 v13, 10, v11"); st.ins("v_lshl_add_u32 v13, v12, 4, v13"); st.ins(f"v_add_u32 v{V_SZ}, s57, v13")
    st.ins("s_mov_b32 s34, 0x8000"); st.ins("s_mov_b32 s35, 0x4000"); st.ins("s_mov_b32 s36, 0x2000"); st.ins("s_mov_b32 s37, 0x6000")
    for i in range(128): st.ins(f"v_mov_b32 v{V_ACC+i}, 0")
    def cread(s, q):
        r = (s % 2) * 16 + q * 4
        st.lg(f"ds_read_b128 a[{r}:{r+3}], v{V_F0 + (s & 1)} offset:{(s >> 1) * 8192 + q * 2048}", ("F", s))
    def perm(s, jp, e):
        hi, d = e >> 2, e & 3
        raw = V_RAW + (s % 3) * 32
        gi = s * 4 + jp
        dst = V_FR + (gi % 2) * 8 + hi * 4 + d
        st.ins(f"v_perm_b32 v{dst}, v{raw + (2*d+1)*4 + jp}, v{raw + (2*d)*4 + jp}, s{S_SELHI if hi else S_SELLO}")
    def xload(q, r):
        reg = V_RAW + 32 + (q * 4 + r) * 4
        so = "0" if q < 2 else "s34"
        st.vm(f"buffer_load_dwordx4 v[{reg}:{reg+3}], v{V_X0}, s[{SRD_X}:{SRD_X+3}], {so} offen offset:{(q & 1) * 1024 + r * 16}", ("X", q))
    st.wait_vm(("C", 0))
    st.ins("s_barrier")
    for q in range(4): cread(0, q)
    for e in range(8): perm(0, 0, e)
    fill = {}
    def at(idx, fn): fill.setdefault(idx, []).append(fn)
    for s in range(16):
        base = s * 32
        for jp in range(4):
            g = s * 4 + jp + 1
            if g < 64:
                s2, jp2 = g // 4, g % 4
                if jp2 == 0: at(base + jp * 8, lambda s2=s2: st.wait_vm(("W", s2)))
                for e in range(8):
                    at(base + jp * 8 + (e * 3) // 4, lambda s2=s2, jp2=jp2, e=e: perm(s2, jp2, e))
        if s + 2 < 16:
            for k in range(8): at(base + 1 + 3 * k, lambda s=s, k=k: wload(s + 2, k))
            at(base + 23, wadv)
        if s == 14:
            for n in range(8): at(base + 1 + 3 * n, lambda n=n: xload(n // 4, n % 4))
        if s == 15:
            for n in range(8): at(base + 1 + 3 * n, lambda n=n: xload(2 + n // 4, n % 4))
        if s + 1 < 16:
            if s == 1:
                at(base + 8, lambda: st.wait_vm(("C", 7))); at(base + 8, lambda: st.ins("s_barrier"))
            for q in range(4): at(base + 9 + 2 * q, lambda s=s, q=q: cread(s + 1, q))
    gi = 0
    for s in range(16):
        st.wait_lg(("F", s))
        for jp in range(4):
            fr = V_FR + ((s * 4 + jp) % 2) * 8
            if s == 0 and jp == 0: st.ins("s_nop 1")
            for hi in range(2):
                j = jp * 2 + hi
                for q in range(4):
                    c = (s % 2) * 16 + q * 4
                    st.ins(f"v_mfma_f32_16x16x32_bf16 v[{acc(q,j)}:{acc(q,j)+3}], v[{fr+hi*4}:{fr+hi*4+3}], a[{c}:{c+3}], v[{acc(q,j)}:{acc(q,j)+3}]")
                    for fn in fill.get(gi, []): fn()
                    gi += 1
    T = V_RAW
    SUM = V_FR
    pr = lambda r: f"v[{r}:{r+1}]"
    st.ins("s_nop 4")
    for q in range(4):
        st.wait_vm(("X", q))
        for rp in range(2):
            x0 = V_RAW + 32 + (q * 4 + 2 * rp) * 4; x1 = x0 + 4
            for d in range(4):
                t = T + (d % 4) * 4
                st.ins(f"v_lshlrev_b32 v{t}, 16, v{x0+d}"); st.ins(f"v_lshlrev_b32 v{t+1}, 16, v{x1+d}")
                st.ins(f"v_and_b32 v{t+2}, 0xffff0000, v{x0+d}"); st.ins(f"v_and_b32 v{t+3}, 0xffff0000, v{x1+d}")
                y0 = acc(q, 2 * d) + 2 * rp; y1 = acc(q, 2 * d + 1) + 2 * rp
                st.ins(f"v_pk_add_f32 {pr(y0)}, {pr(y0)}, {pr(t)}"); st.ins(f"v_pk_add_f32 {pr(y1)}, {pr(y1)}, {pr(t+2)}")
        s0 = SUM + q * 4
        st.ins(f"v_pk_add_f32 {pr(s0)}, {pr(acc(q,0))}, {pr(acc(q,0)+2)}")
        st.ins(f"v_pk_add_f32 {pr(s0+2)}, {pr(acc(q,1))}, {pr(acc(q,1)+2)}")
        for j in range(2, 8):
            for rp in range(2):
                st.ins(f"v_pk_add_f32 {pr(s0+2*rp)}, {pr(s0+2*rp)}, {pr(acc(q,j)+2*rp)}")
        st.ins(f"v_pk_add_f32 {pr(s0)}, {pr(s0)}, {pr(s0+2)}")
        st.ins(f"v_add_f32 v{s0}, v{s0}, v{s0+1}")
    STAT = 65536
    def reduce_write(which):
        s = [SUM + q * 4 for q in range(4)]
        st.ins("s_nop 1")
        st.ins(f"v_permlane32_swap_b32 v{s[0]}, v{s[1]}"); st.ins(f"v_permlane32_swap_b32 v{s[2]}, v{s[3]}")
        st.ins(f"v_add_f32 v{s[0]}, v{s[0]}, v{s[1]}"); st.ins(f"v_add_f32 v{s[2]}, v{s[2]}, v{s[3]}")
        st.ins("s_nop 1")
        st.ins(f"v_permlane16_swap_b32 v{s[0]}, v{s[2]}")
        st.ins(f"v_add_f32 v{s[0]}, v{s[0]}, v{s[2]}")
        st.lg(f"ds_write_b32 v13, v{s[0]} offset:{STAT + which * 1024 - 65536 + 65535 - 65535}", ("SW", which))
    st.ins("v_lshrrev_b32 v13, 1, v11"); st.ins("v_and_b32 v14, 1, v11"); st.ins("v_lshl_add_u32 v13, v14, 1, v13")
    st.ins("v_lshlrev_b32 v13, 8, v13"); st.ins("v_lshl_add_u32 v13, v12, 4, v13")
    st.ins(f"s_lshl_b32 s57, s{S_W}, 2"); st.ins(f"s_add_u32 s57, s57, {STAT}"); st.ins("v_add_u32 v13, s57, v13")
    st.ins("v_lshlrev_b32 v14, 4, v12"); st.ins(f"v_add_u32 v14, {STAT}, v14")
    reduce_write(0)
    HS = V_RAW + 32
    sq = ["0", "s35", "s36", "s37"]
    st.ins(f"s_cmp_ge_u32 s{S_W}, 2")
    st.ins("s_cbranch_scc1 L1_hz_sd")
    for q in range(4):
        ng = "-" if q & 1 else ""
        for r in range(4):
            h = HS + (q * 4 + r) * 4
            for d in range(4):
                st.ins(f"v_cvt_pk_bf16_f32 v{h+d}, {ng}v{acc(q,2*d)+r}, {ng}v{acc(q,2*d+1)+r}")
            st.ins(f"buffer_store_dwordx4 v[{h}:{h+3}], v{V_SZ}, s[{SRD_WS}:{SRD_WS+3}], {sq[q]} offen offset:{r*256} {opt.get('stflag','')}")
    st.ins("s_branch L1_hz_done")
    st.ins("L1_hz_sd:")
    for qq in range(2):
        e, o = 2 * qq, 2 * qq + 1
        for rp in range(2):
            for j in range(8):
                ts = T + j * 4
                st.ins(f"v_pk_mul_f32 {pr(ts)}, {pr(acc(e,j)+2*rp)}, 0.5 op_sel_hi:[1,0]")
                st.ins(f"v_pk_fma_f32 {pr(ts+2)}, {pr(acc(o,j)+2*rp)}, -0.5, {pr(ts)} op_sel_hi:[1,0,1]")
                st.ins(f"v_pk_fma_f32 {pr(ts)}, {pr(acc(o,j)+2*rp)}, 0.5, {pr(ts)} op_sel_hi:[1,0,1]")
            for rr in range(2):
                r = 2 * rp + rr
                for sel in range(2):
                    q = 2 * qq + sel
                    h = HS + (q * 4 + r) * 4
                    for d in range(4):
                        st.ins(f"v_cvt_pk_bf16_f32 v{h+d}, v{T + (2*d)*4 + sel*2 + rr}, v{T + (2*d+1)*4 + sel*2 + rr}")
                    st.ins(f"buffer_store_dwordx4 v[{h}:{h+3}], v{V_SZ}, s[{SRD_WS}:{SRD_WS+3}], {sq[q]} offen offset:{r*256} {opt.get('stflag','')}")
    st.ins("L1_hz_done:")
    st.wait_lg(("SW", 0))
    st.ins("s_barrier")
    for q in range(4): st.lg(f"ds_read_b128 v[{T+q*4}:{T+q*4+3}], v14 offset:{q*256}", ("SR0", q))
    MU = T + 16
    st.ins("s_mov_b32 s38, 0xbb000000")
    for q in range(4):
        st.wait_lg(("SR0", q))
        t = T + q * 4
        st.ins(f"v_pk_add_f32 {pr(t)}, {pr(t)}, {pr(t+2)}"); st.ins(f"v_add_f32 v{t}, v{t}, v{t+1}")
        st.ins(f"v_mul_f32 v{MU+2*q}, s38, v{t}")
    for q in range(4):
        s0 = SUM + q * 4
        for j in range(8):
            for rp in range(2):
                y = acc(q, j) + 2 * rp
                st.ins(f"v_pk_add_f32 {pr(y)}, {pr(y)}, {pr(MU+2*q)} op_sel_hi:[1,0]")
                if j == 0: st.ins(f"v_pk_mul_f32 {pr(s0+2*rp)}, {pr(y)}, {pr(y)}")
                else: st.ins(f"v_pk_fma_f32 {pr(s0+2*rp)}, {pr(y)}, {pr(y)}, {pr(s0+2*rp)}")
        st.ins(f"v_pk_add_f32 {pr(s0)}, {pr(s0)}, {pr(s0+2)}")
        st.ins(f"v_add_f32 v{s0}, v{s0}, v{s0+1}")
    reduce_write(1)
    st.wait_lg(("SW", 1))
    st.ins("s_barrier")
    for q in range(4): st.lg(f"ds_read_b128 v[{T+q*4}:{T+q*4+3}], v14 offset:{1024 + q*256}", ("SR1", q))
    st.ins("s_mov_b32 s38, 0x3b000000")
    st.ins("s_mov_b32 s39, 0x3727c5ac")
    st.ins("s_mov_b32 s40, 0xbfb8aa3b")
    st.ins("s_mov_b32 s41, 0x3a800000")
    KT = SUM
    for q in range(4):
        st.wait_lg(("SR1", q))
        t = T + q * 4
        st.ins(f"v_pk_add_f32 {pr(t)}, {pr(t)}, {pr(t+2)}"); st.ins(f"v_add_f32 v{t}, v{t}, v{t+1}")
        st.ins(f"v_mov_b32 v{t+1}, s39")
        st.ins(f"v_fmac_f32 v{t+1}, s38, v{t}")
        st.ins(f"v_rsq_f32 v{t+2}, v{t+1}")
        st.ins(f"v_sqrt_f32 v{t+3}, v{t+1}")
        st.ins("s_nop 0")
        st.ins(f"v_mul_f32 v{KT+q*4}, s40, v{t+2}")
        st.ins(f"v_mul_f32 v{KT+q*4+2}, s41, v{t+3}")
    for q in range(4):
        for rp in range(2):
            tb = T + (rp % 2) * 16
            for j in range(8):
                y = acc(q, j) + 2 * rp
                st.ins(f"v_pk_mul_f32 {pr(tb+2*j)}, {pr(y)}, {pr(KT+q*4)} op_sel_hi:[1,0]")
            for e in range(16): st.ins(f"v_exp_f32 v{tb+e}, v{tb+e}")
            for j in range(8):
                st.ins(f"v_pk_fma_f32 {pr(tb+2*j)}, {pr(tb+2*j)}, {pr(KT+q*4+2)}, {pr(KT+q*4+2)} op_sel_hi:[1,0,0]")
            for e in range(16): st.ins(f"v_rcp_f32 v{tb+e}, v{tb+e}")
            for j in range(8):
                y = acc(q, j) + 2 * rp
                st.ins(f"v_pk_mul_f32 {pr(tb+2*j)}, {pr(tb+2*j)}, {pr(y)}")
            for rr in range(2):
                r = 2 * rp + rr
                h = acc(q, 0) + 0
                h = HS + (q * 4 + r) * 4
                for d in range(4):
                    st.ins(f"v_cvt_pk_f16_f32 v{h+d}, v{tb + (2*d)*2 + rr}, v{tb + (2*d+1)*2 + rr}")
                st.ins(f"buffer_store_dwordx4 v[{h}:{h+3}], v{V_ST}, s[{SRD_WS}:{SRD_WS+3}], 0 offen offset:{(q&1)*2048 + r*512 + (q>>1)*256} {opt.get('stflag','')}")
    st.ins("s_endpgm")
    for l in st.resolve(): a(l)

def gen_weights(a, opt):
    V_A = 1
    V_B0, V_B1 = 7, 8
    V_BR = 16
    V_BF = 64
    V_AF = 96
    V_ACC = 128
    S_AOFF, S_BOFF = 26, 27
    def acc(dj, c, j): return V_ACC + ((dj * 2 + c) * 4 + j) * 4
    a("s_load_dwordx2 s[4:5], s[0:1], 40")
    a("s_load_dwordx2 s[6:7], s[0:1], 32")
    a("s_load_dwordx2 s[30:31], s[0:1], 8")
    a("s_load_dwordx2 s[32:33], s[0:1], 64")
    a("s_sub_u32 s53, s53, 16")
    a("s_lshr_b32 s54, s53, 3"); a("s_lshl_b32 s55, s52, 1"); a("s_add_u32 s54, s54, s55")
    a("s_and_b32 s55, s53, 7")
    a("v_lshrrev_b32 v13, 1, v12"); a("v_and_b32 v13, 1, v13"); a("v_lshlrev_b32 v13, 6, v13")
    a("v_lshrrev_b32 v14, 2, v12"); a("v_lshl_add_u32 v13, v14, 4, v13")
    a("v_and_b32 v14, 1, v12"); a("v_lshl_add_u32 v13, v14, 3, v13")
    a("v_lshl_add_u32 v13, v11, 13, v13"); a("s_lshl_b32 s57, s55, 7")
    a(f"v_add_u32 v{V_B0}, s57, v13"); a(f"v_add_u32 v{V_B1}, 4096, v{V_B0}")
    a("s_waitcnt lgkmcnt(0)")
    srd(a, SRD_B, 6, 512 * 1024)
    srd(a, SRD_WS, 32, 0x10000000)
    a(f"s_cmp_eq_u32 s{S_W}, 3")
    a("s_cbranch_scc1 L1_helper")
    srd(a, SRD_A, 4, 9 * 512 * 1024)
    a("v_lshrrev_b32 v13, 2, v12"); a("v_lshlrev_b32 v13, 3, v13"); a("v_and_b32 v14, 3, v12"); a("v_add_u32 v13, v13, v14")
    a("v_lshlrev_b32 v13, 10, v13"); a("v_lshl_add_u32 v13, v11, 4, v13")
    a(f"s_mul_i32 s57, s{S_W}, {3 * 512 * 1024}"); a("s_lshl_b32 s58, s54, 15"); a("s_add_u32 s57, s57, s58")
    a(f"v_add_u32 v{V_A}, s57, v13")
    for n in range(1, 6):
        a(f"v_add_u32 v{V_A+n}, {(n >> 1) * 512 * 1024 + (n & 1) * 4096}, v{V_A}")
    a(f"s_lshl_b32 s{S_AOFF}, s55, 7")
    a(f"s_lshl_b32 s{S_BOFF}, s55, 16")
    st = Stream()
    NA = 4
    def aload(s, n):
        r = (s % NA) * 24 + n * 4
        st.vm(f"buffer_load_dwordx4 a[{r}:{r+3}], v{V_A + n}, s[{SRD_A}:{SRD_A+3}], s{S_AOFF} offen offset:{(s & 1) * 64}", ("A", s))
    def aadv():
        st.ins(f"s_add_u32 s{S_AOFF}, s{S_AOFF}, 128"); st.ins(f"s_and_b32 s{S_AOFF}, s{S_AOFF}, 0x3ff")
    def bload(s, k):
        r = V_BR + (s % 3) * 16 + k * 2
        st.vm(f"buffer_load_dwordx2 v[{r}:{r+1}], v{V_B0 + k // 4}, s[{SRD_B}:{SRD_B+3}], s{S_BOFF} offen offset:{(k % 4) * 1024}", ("B", s))
    def badv():
        st.ins(f"s_add_u32 s{S_BOFF}, s{S_BOFF}, 0x8000"); st.ins(f"s_and_b32 s{S_BOFF}, s{S_BOFF}, 0x7ffff")
    def perm(s, e):
        j, d = e >> 2, e & 3
        raw = V_BR + (s % 3) * 16
        dst = V_BF + (s % 2) * 16 + e
        st.ins(f"v_perm_b32 v{dst}, v{raw + (2*d+1)*2 + (j >> 1)}, v{raw + (2*d)*2 + (j >> 1)}, s{S_SELHI if j & 1 else S_SELLO}")
    for k in range(8): bload(0, k)
    badv()
    for n in range(6): aload(0, n); aload(1, n)
    aadv()
    for k in range(8): bload(1, k)
    badv()
    for i in range(96): st.ins(f"v_mov_b32 v{V_ACC+i}, 0")
    st.wait_vm(("B", 0))
    for e in range(16): perm(0, e)
    fill = {}
    def at(idx, fn): fill.setdefault(idx, []).append(fn)
    for s in range(16):
        base = s * 24
        if s + 2 < 16:
            for k in range(8): at(base + k, lambda s=s, k=k: bload(s + 2, k))
            at(base + 8, badv)
            if s % 2 == 0:
                for n in range(6):
                    at(base + 9 + 2 * n, lambda s=s, n=n: aload(s + 2, n)); at(base + 10 + 2 * n, lambda s=s, n=n: aload(s + 3, n))
                at(base + 21, aadv)
        if s + 1 < 16:
            at(base + 6, lambda s=s: st.wait_vm(("B", s + 1)))
            for e in range(16): at(base + 6 + e, lambda s=s, e=e: perm(s + 1, e))
    gi = 0
    for s in range(16):
        st.wait_vm(("A", s))
        if s == 0: st.ins("s_nop 0")
        for n in range(6):
            for j in range(4):
                ar = (s % NA) * 24 + n * 4; br = V_BF + (s % 2) * 16 + j * 4
                c = acc(n >> 1, n & 1, j)
                st.ins(f"v_mfma_f32_16x16x32_bf16 v[{c}:{c+3}], a[{ar}:{ar+3}], v[{br}:{br+3}], v[{c}:{c+3}]")
                for fn in fill.get(gi, []): fn()
                gi += 1
    st.ins("s_nop 7")
    pr = lambda r: f"v[{r}:{r+1}]"
    U1 = 96
    for c in range(2):
        for j in range(4):
            for rp in range(2):
                g0, g1, g2 = [acc(dj, c, j) + 2 * rp for dj in range(3)]
                u = U1 + (c * 4 + j) * 4 + 2 * rp
                st.ins(f"v_pk_add_f32 {pr(16)}, {pr(g0)}, {pr(g2)}")
                st.ins(f"v_pk_mul_f32 {pr(16)}, {pr(16)}, 0.5 op_sel_hi:[1,0]")
                st.ins(f"v_pk_fma_f32 {pr(u)}, {pr(g1)}, 0.5, {pr(16)} op_sel_hi:[1,0,1]")
                st.ins(f"v_pk_fma_f32 {pr(g1)}, {pr(g1)}, -0.5, {pr(16)} op_sel_hi:[1,0,1]")
    def ureg(p, c, j):
        return {0: acc(0, c, j), 1: U1 + (c * 4 + j) * 4, 2: acc(1, c, j), 3: acc(2, c, j)}[p]
    st.ins("v_mov_b32 v16, 0"); st.ins("v_mov_b32 v17, 0")
    for n in range(64):
        r = 96 + 2 * n
        st.ins(f"v_max3_f32 v{16 + (n & 1)}, |v{r}|, |v{r+1}|, v{16 + (n & 1)}")
    st.ins("v_max_f32 v16, v16, v17")
    for sh in (1, 2, 4, 8):
        st.ins("s_nop 1")
        st.ins(f"v_max_f32_dpp v16, v16, v16 row_ror:{sh} row_mask:0xf bank_mask:0xf")
    st.ins("v_mov_b32 v17, v16"); st.ins("s_nop 1")
    st.ins("v_permlane32_swap_b32 v16, v17"); st.ins("v_max_f32 v16, v16, v17")
    st.ins("v_mov_b32 v17, v16"); st.ins("s_nop 1")
    st.ins("v_permlane16_swap_b32 v16, v17"); st.ins("v_max_f32 v16, v16, v17")
    st.ins(f"s_lshl_b32 s57, s{S_W}, 2"); st.ins("v_mov_b32 v17, s57")
    st.lg("ds_write_b32 v17, v16", ("MW", 0))
    st.wait_lg(("MW", 0))
    st.ins("s_barrier")
    st.ins("v_mov_b32 v17, 0")
    st.lg("ds_read_b96 v[18:20], v17", ("MR", 0))
    st.wait_lg(("MR", 0))
    st.ins("v_max3_f32 v16, v18, v19, v20")
    st.ins("s_nop 0")
    st.ins("v_readfirstlane_b32 s57, v16")
    st.ins("s_nop 3")
    st.ins("s_lshr_b32 s57, s57, 23")
    st.ins("s_sub_i32 s57, 143, s57"); st.ins("s_and_b32 s57, s57, -4"); st.ins("s_sub_i32 s57, s57, 2")
    st.ins("s_min_i32 s57, s57, 102")
    st.ins("s_add_i32 s58, s57, 127"); st.ins("s_lshl_b32 s58, s58, 23")
    st.ins("s_mov_b32 s59, s58")
    st.ins(f"s_mul_i32 s60, s55, {4 * USTREAM}"); st.ins("s_mul_i32 s61, s54, 12288"); st.ins("s_add_u32 s60, s60, s61")
    st.ins(f"s_lshl_b32 s61, s{S_W}, 12"); st.ins("s_add_u32 s60, s60, s61"); st.ins(f"s_add_u32 s60, s60, {WS_U}")
    st.ins("v_lshlrev_b32 v17, 4, v10")
    n = 0
    for p in range(4):
        for j in range(4):
            h = 24 + (n % 4) * 4; n += 1
            for c in range(2):
                u = ureg(p, c, j)
                st.ins(f"v_pk_mul_f32 {pr(u)}, {pr(u)}, s[58:59]"); st.ins(f"v_pk_mul_f32 {pr(u+2)}, {pr(u+2)}, s[58:59]")
                st.ins(f"v_cvt_pk_f16_f32 v{h+2*c}, v{u}, v{u+1}"); st.ins(f"v_cvt_pk_f16_f32 v{h+2*c+1}, v{u+2}, v{u+3}")
            st.ins(f"buffer_store_dwordx4 v[{h}:{h+3}], v17, s[{SRD_WS}:{SRD_WS+3}], s60 offen offset:{j*1024} {opt.get('ustflag','')}")
        st.ins(f"s_add_u32 s60, s60, {USTREAM}")
    st.ins("s_lshl_b32 s60, s55, 4"); st.ins("s_add_u32 s60, s60, s54"); st.ins("s_lshl_b32 s60, s60, 2"); st.ins(f"s_add_u32 s60, s60, {WS_SC}")
    st.ins("v_mov_b32 v16, s57"); st.ins("v_mov_b32 v17, s60")
    st.ins(f"s_cmp_eq_u32 s{S_W}, 0"); st.ins("s_cbranch_scc0 L1_wdone")
    st.ins(f"buffer_store_dword v16, v17, s[{SRD_WS}:{SRD_WS+3}], 0 offen")
    st.ins("L1_wdone:")
    st.ins("s_endpgm")
    for l in st.resolve(): a(l)
    a.label("L1_helper")
    st = Stream()
    st.ins(f"s_lshl_b32 s{S_BOFF}, s54, 15")
    for k in range(8): bload(0, k)
    b = Asm(); srd(b, SRD_X, 30, 8 << 20)
    for l in b.lines: st.ins(l.strip())
    if opt.get("xpf", 1):
        st.ins("s_lshl_b32 s57, s52, 4"); st.ins("s_add_u32 s57, s57, s53"); st.ins("s_lshl_b32 s57, s57, 16")
        st.ins("v_lshlrev_b32 v99, 7, v10")
        for n in range(8):
            st.vm(f"buffer_load_dword v{100+n}, v99, s[{SRD_X}:{SRD_X+3}], s57 offen", ("P", n))
            st.ins("s_add_u32 s57, s57, 8192")
    st.wait_vm(("B", 0))
    for e in range(16): perm(0, e)
    st.ins(f"s_mul_i32 s60, s55, {4 * USTREAM}"); st.ins("s_and_b32 s61, s54, 7"); st.ins("s_lshl_b32 s61, s61, 12"); st.ins("s_add_u32 s60, s60, s61")
    st.ins(f"s_add_u32 s60, s60, {WS_U + 196608}")
    st.ins("s_cmp_lt_u32 s54, 8")
    st.ins(f"s_cselect_b32 s61, 0, {USTREAM}"); st.ins(f"s_cselect_b32 s62, {3*USTREAM}, {2*USTREAM}".replace(f"{3*USTREAM}, {2*USTREAM}", "s63, s64"))
    st.items.insert(len(st.items) - 3, ("i", f"s_mov_b32 s63, {3*USTREAM}", None))
    st.items.insert(len(st.items) - 3, ("i", f"s_mov_b32 s64, {2*USTREAM}", None))
    st.ins("s_add_u32 s61, s61, s60"); st.ins("s_add_u32 s62, s62, s60")
    st.ins("v_lshlrev_b32 v17, 4, v10")
    for so in (61, 62):
        for j in range(4):
            r = V_BF + j * 4
            st.ins(f"buffer_store_dwordx4 v[{r}:{r+3}], v17, s[{SRD_WS}:{SRD_WS+3}], s{so} offen offset:{j*1024} {opt.get('ustflag','')}")
    st.ins("s_endpgm")
    for l in st.resolve(): a(l)

def gen_k1(a, name, opt={}):
    kernel_begin(a, name)
    a("s_cmp_ge_u32 s2, 256")
    a("s_cbranch_scc1 L1_end")
    a("v_lshrrev_b32 v13, 6, v0")
    a("v_and_b32 v10, 63, v0")
    a("v_lshrrev_b32 v11, 4, v10")
    a(f"v_readfirstlane_b32 s{S_W}, v13")
    a("v_and_b32 v12, 15, v10")
    a(f"s_mov_b32 s{S_SELLO}, 0x05040100"); a(f"s_mov_b32 s{S_SELHI}, 0x07060302")
    a("s_and_b32 s52, s2, 7"); a("s_lshr_b32 s53, s2, 3")
    a("s_cmp_ge_u32 s53, 16")
    a("s_cbranch_scc1 L1_weights")
    gen_rows(a, opt)
    a.label("L1_weights")
    gen_weights(a, opt)
    a.label("L1_end")
    a("s_endpgm")
```

```python
from asmlib import *

WS_H = 0
WS_HZ = 8 << 20
WS_U = 16 << 20
USTREAM = 16 * 12288 + 32768
WS_SC = 24 << 20
SLOT = 24576

S_P = 3
SRD_H = 8; SRD_WS = 12; SRD_XF = 16; SRD_OUT = 20
S_HOFF = 24; S_UOFF = 25; S_CNT = 26; S_HZOFF = 27; S_SIG = 28; S_INV = 29; S_M0B = 30; S_ROW4 = 31
S_R = 32
V_U0, V_U1, V_U2 = 1, 2, 3
V_LX0, V_LY0, V_LX1, V_LY1 = 4, 5, 6, 7
V_DMA = 8
V_EW0, V_EW1, V_ER0, V_ER1, V_OUT, V_T = 14, 15, 16, 17, 18, 19
V_RAW = 20
V_V = 60
V_HZ = 76
V_ACC = 128
F = [0, 4, 12, 24, 36, 48, 60, 72, 84, 92]

def acc(y, j): return V_ACC + (y * 4 + j) * 4

class Stream:
    def __init__(self):
        self.items = []
    def ins(self, t): self.items.append(("i", t, None))
    def vm(self, t, tag): self.items.append(("vm", t, tag))
    def lg(self, t, tag): self.items.append(("lg", t, tag))
    def wait_vm(self, tag): self.items.append(("wvm", None, tag))
    def wait_lg(self, tag): self.items.append(("wlg", None, tag))
    def mark(self, name): self.items.append(("mark", name, None))
    def resolve(self):
        vm, lg, out = [], [], []
        vdone = ldone = 0
        for k, t, tag in self.items:
            if k == "i": out.append(t)
            elif k == "mark": out.append("@" + t)
            elif k == "vm":
                vm.append(tag); out.append(t); assert len(vm) - vdone <= 63, ("vm overflow", tag)
            elif k == "lg":
                lg.append(tag); out.append(t); assert len(lg) - ldone <= 15, ("lgkm overflow", tag)
            elif k == "wvm":
                idx = max(i for i, x in enumerate(vm) if x == tag)
                n = len(vm) - 1 - idx
                if idx + 1 <= vdone: continue
                vdone = idx + 1
                out.append(f"s_waitcnt vmcnt({n})")
            elif k == "wlg":
                if tag is None: n = 0
                else:
                    idx = max(i for i, x in enumerate(lg) if x == tag)
                    n = len(lg) - 1 - idx
                if len(lg) - n <= ldone: continue
                ldone = len(lg) - n
                out.append(f"s_waitcnt lgkmcnt({n})")
        return out

def hz_reg(f):
    if f < 16: return ("a", 192 + 4 * f)
    if f < 28: return ("v", V_HZ + 4 * (f - 16))
    if f < 44: return ("a", 128 + 4 * (f - 28))
    if f < 60: return ("a", 192 + 4 * (f - 44))
    return ("v", V_HZ + 4 * (f - 60))

def rng(p, b, n=4): return f"{p}[{b}:{b+n-1}]"

def b_load(st, step, k):
    sl = step % 4
    r = sl * 48 + k * 4
    st.vm(f"buffer_load_dwordx4 a[{r}:{r+3}], v{V_U0 + k // 4}, s[{SRD_WS}:{SRD_WS+3}], s{S_UOFF} offen offset:{(k % 4) * 1024}", ("B", step))

def dma_m0(st, step, k):
    st.ins(f"s_add_u32 m0, s{S_M0B}, {(step % 4) * SLOT + k * 4096}")

def dma(st, step, k):
    st.vm(f"buffer_load_dwordx4 v{V_DMA + k}, s[{SRD_H}:{SRD_H+3}], s{S_HOFF} offen lds", ("D", step))

def raw_read(st, step, r, which):
    g = step * 10 + r
    reg = V_RAW + (g % 5) * 8 + which * 4
    sl = step % 4
    va = (V_LX0 if sl < 2 else V_LX1) + which
    off = (sl % 2) * SLOT + r * 1088
    st.lg(f"ds_read_b128 v[{reg}:{reg+3}], v{va} offset:{off}", ("R", g, which))

def vcalc(st, step, r, d, scaled, phase):
    g = step * 10 + r
    x = V_RAW + (g % 5) * 8 + d
    v = V_V + (g % 4) * 4 + d
    if phase == 0:
        st.ins(f"v_pk_fma_f16 v{v}, v{x+4}, s{S_SIG}, v{x}")
    else:
        st.ins(f"v_pk_mul_f16 v{v}, v{v}, s{S_R + (step % 4 if step < 12 else step - 12) + (4 if scaled == 'next' else 0)}")

def hz_load(st, f):
    y, kc = f // 8, f % 8
    p, b = hz_reg(f)
    st.vm(f"buffer_load_dwordx4 {rng(p, b)}, v{V_U0 + kc // 4}, s[{SRD_WS}:{SRD_WS+3}], s{S_HZOFF} offen offset:{(kc % 4) * 1024}", ("Z", f))
    if kc == 7: st.ins(f"s_add_u32 s{S_HZOFF}, s{S_HZOFF}, 0x10000")

def build_main(scaled, opt):
    st = Stream()
    for s in range(3):
        for k in range(12): st.vm("#pro", ("B", s))
        for k in range(6): st.vm("#pro", ("D", s))
    st.wait_vm(("D", 0))
    st.ins("s_barrier")
    fill = {}
    def at(idx, fn): fill.setdefault(idx, []).append(fn)
    NST = 16
    LR, LV = opt.get("LR", 28), opt.get("LV", 8)
    for s in range(NST):
        base = s * 96
        for r in range(10):
            f0 = base + F[r]
            at(f0 - LR, lambda s=s, r=r: raw_read(st, s, r, 0))
            at(f0 - LR + 1, lambda s=s, r=r: raw_read(st, s, r, 1))
            at(f0 - LV, lambda s=s, r=r: st.wait_lg(("R", s * 10 + r, 1)))
            for d in range(4):
                at(f0 - LV + d, lambda s=s, r=r, d=d: vcalc(st, s, r, d, None, 0))
                if scaled:
                    pos = f0 - LV + d + 1
                    it_emit = (pos // 96) // 4 if pos >= 0 else 0
                    def mul(s=s, r=r, d=d, pos=pos):
                        g = s * 10 + r
                        v = V_V + (g % 4) * 4 + d
                        emit_step = max(pos, 0) // 96
                        it = min(emit_step // 4, 3)
                        st.ins(f"v_pk_mul_f16 v{v}, v{v}, s{S_R + s - 4 * it}")
                    at(pos, mul)
        bpos = [0, 2, 10, 12, 14, 22, 24, 26, 34, 36, 38, 46]
        nb = 12 if s < 15 else 8
        for k in range(nb):
            at(base + bpos[k], lambda s=s, k=k: b_load(st, s + 3, k))
        at(base + 48, lambda: st.ins(f"s_add_u32 s{S_UOFF}, s{S_UOFF}, 12288"))
        if s < 15:
            at(base + 59, lambda s=s: st.wait_vm(("D", s + 1)))
            at(base + 59, lambda: st.ins("s_barrier"))
        dpos = [62, 66, 70, 74, 76, 78]
        if s <= 12:
            for k in range(6):
                at(base + dpos[k], lambda s=s, k=k: dma_m0(st, s + 3, k))
                at(base + dpos[k] + 1, lambda s=s, k=k: dma(st, s + 3, k))
            at(base + 82, lambda: st.ins(f"s_add_u32 s{S_HOFF}, s{S_HOFF}, 4096"))
        else:
            zl = {13: range(0, 9), 14: range(9, 18), 15: range(18, 28)}[s]
            zp = [50, 54, 62, 66, 70, 74, 76, 78, 82, 90]
            for n, f in enumerate(zl):
                at(base + zp[n], lambda f=f: hz_load(st, f))
    def scale(y, e):
        r = acc(y, 0) + e
        st.ins(f"v_mul_f32 v{r}, s{S_INV}, v{r}")
    for e in range(16):
        at(15 * 96 + 40 + e, lambda e=e: scale(0, e))
    Z0 = 16 * 96
    for y in range(8):
        zb = Z0 + y * 32
        if y < 7:
            for e in range(16):
                at(zb + 8 + e, lambda y=y, e=e: scale(y + 1, e))
        if y >= 1:
            for j in range(4):
                def wr(y=y - 1, j=j):
                    va = V_EW0 if y < 4 else V_EW1
                    if j == 0 and y >= 2: st.wait_lg(("W", y - 2))
                    st.lg(f"ds_write_b128 v{va}, v[{acc(y,j)}:{acc(y,j)+3}] offset:{(y % 4) * 16384 + j * 1024}", ("W", y))
                at(zb + 8 + 2 * j, wr)
    for n, f in enumerate(range(28, 44)): at(Z0 + 2 * n, lambda f=f: hz_load(st, f))
    at(Z0 + 20, lambda: st.ins("s_barrier"))
    for n, f in enumerate(range(44, 52)): at(Z0 + 32 + 1 + 2 * n, lambda f=f: hz_load(st, f))
    for n, f in enumerate(range(52, 60)): at(Z0 + 64 + 1 + 2 * n, lambda f=f: hz_load(st, f))
    for n, f in enumerate(range(60, 64)): at(Z0 + 96 + 1 + 2 * n, lambda f=f: hz_load(st, f))
    XF = V_RAW
    def xf_load(rs, par, h):
        r = XF + ((rs * 2 + par) * 2 + h) * 4
        so = "0" if rs == 0 else f"s{S_ROW4}"
        st.vm(f"buffer_load_dwordx4 v[{r}:{r+3}], v{V_OUT}, s[{SRD_XF}:{SRD_XF+3}], {so} offen offset:{par*1024 + h*64}", ("X", rs))
    n = 0
    for rs in range(2):
        for par in range(2):
            for h in range(2):
                at(Z0 + 96 + 10 + 2 * n, lambda rs=rs, par=par, h=h: xf_load(rs, par, h)); n += 1
    at(Z0 + 128 + 24, lambda: st.wait_lg(("W", 3)))
    at(Z0 + 128 + 24, lambda: st.ins("s_barrier"))
    M = V_ACC
    def mreg(p, j): return M + (p * 4 + j) * 4
    def m_read(rs, p, j):
        va = V_ER0 if rs == 0 else V_ER1
        st.lg(f"ds_read_b128 v[{mreg(p,j)}:{mreg(p,j)+3}], v{va} offset:{p*4096 + j*1024}", ("M", rs, j))
    def final_ops(rs, part):
        ops = []
        T = V_V
        for j in ([part] if part < 4 else []):
            ops.append(lambda j=j: st.wait_lg(("M", rs, j)))
            for hh in range(2):
                m0, m1, m2, m3 = [mreg(p, j) + 2 * hh for p in range(4)]
                ops.append(lambda m0=m0, m1=m1: st.ins(f"v_pk_add_f32 v[{m0}:{m0+1}], v[{m0}:{m0+1}], v[{m1}:{m1+1}]"))
                ops.append(lambda m3=m3, m1=m1: st.ins(f"v_pk_add_f32 v[{m3}:{m3+1}], v[{m1}:{m1+1}], v[{m3}:{m3+1}] neg_lo:[0,1] neg_hi:[0,1]"))
                ops.append(lambda m0=m0, m2=m2: st.ins(f"v_pk_add_f32 v[{m0}:{m0+1}], v[{m0}:{m0+1}], v[{m2}:{m2+1}]"))
                ops.append(lambda m3=m3, m2=m2: st.ins(f"v_pk_add_f32 v[{m3}:{m3+1}], v[{m3}:{m3+1}], v[{m2}:{m2+1}] neg_lo:[0,1] neg_hi:[0,1]"))
        if part < 4: return ops
        ops.append(lambda: st.wait_vm(("X", rs)))
        for par in range(2):
            yreg = lambda j, r, par=par: mreg(0 if par == 0 else 3, j) + r
            for h in range(2):
                xr = XF + ((rs * 2 + par) * 2 + h) * 4
                for dl in range(2):
                    t = T + ((par * 2 + h) % 2) * 8 + dl * 4
                    ops.append(lambda t=t, x=xr + dl: st.ins(f"v_lshlrev_b32 v{t}, 16, v{x}"))
                    ops.append(lambda t=t, x=xr + dl + 2: st.ins(f"v_lshlrev_b32 v{t+1}, 16, v{x}"))
                    ops.append(lambda t=t, x=xr + dl: st.ins(f"v_and_b32 v{t+2}, 0xffff0000, v{x}"))
                    ops.append(lambda t=t, x=xr + dl + 2: st.ins(f"v_and_b32 v{t+3}, 0xffff0000, v{x}"))
                    y0 = yreg(dl * 2, 2 * h); y1 = yreg(dl * 2 + 1, 2 * h)
                    ops.append(lambda t=t, y0=y0: st.ins(f"v_pk_add_f32 v[{y0}:{y0+1}], v[{y0}:{y0+1}], v[{t}:{t+1}]"))
                    ops.append(lambda t=t, y1=y1: st.ins(f"v_pk_add_f32 v[{y1}:{y1+1}], v[{y1}:{y1+1}], v[{t+2}:{t+3}]"))
                for d in range(4):
                    r = 2 * h + (d >> 1); j = (d & 1) * 2
                    ops.append(lambda d=d, xr=xr, a_=yreg(j, r), b_=yreg(j + 1, r): st.ins(f"v_cvt_pk_bf16_f32 v{xr+d}, v{a_}, v{b_}"))
                so = "0" if rs == 0 else f"s{S_ROW4}"
                ops.append(lambda xr=xr, so=so, par=par, h=h: st.vm(f"buffer_store_dwordx4 v[{xr}:{xr+3}], v{V_OUT}, s[{SRD_OUT}:{SRD_OUT+3}], {so} offen offset:{par*1024 + h*64}", ("S", rs)))
        return ops
    rpos = {0: Z0 + 128 + 25, 1: Z0 + 128 + 29, 2: Z0 + 160 + 20, 3: Z0 + 160 + 24}
    cpos = {0: Z0 + 160 + 3, 1: Z0 + 160 + 15, 2: Z0 + 192 + 0, 3: Z0 + 192 + 4}
    for j in range(4):
        for p in range(4):
            at(rpos[j] + p, lambda p=p, j=j: m_read(0, p, j))
        for n, op in enumerate(final_ops(0, j)):
            at(cpos[j] + max(0, n - 1) // 2, op)
    fo = final_ops(0, 4)
    start = Z0 + 192 + 16
    endp = Z0 + 256 - 2
    for n, op in enumerate(fo):
        at(start + (n * (endp - start)) // len(fo), op)
    for idx in sorted(k for k in fill if k < 0):
        for fn in fill[idx]: fn()
    st.ins("s_nop 1")
    gi = 0
    for s in range(NST):
        if s % 4 == 0: st.mark(f"it{s//4}")
        for r in range(10):
            g = s * 10 + r
            v = V_V + (g % 4) * 4
            for dy in range(3):
                y = r - dy
                if y < 0 or y > 7: continue
                for j in range(4):
                    u = (s % 4) * 48 + (dy * 4 + j) * 4
                    if gi % 96 == 0 and s < 3 and False: pass
                    st.ins(f"v_mfma_f32_16x16x32_f16 v[{acc(y,j)}:{acc(y,j)+3}], a[{u}:{u+3}], v[{v}:{v+3}], v[{acc(y,j)}:{acc(y,j)+3}]")
                    for fn in fill.get(gi, []): fn()
                    gi += 1
    st.mark("z2")
    for y in range(8):
        for kc in range(8):
            f = y * 8 + kc
            if kc % 4 == 0:
                st.wait_vm(("Z", f + 3))
                if y == 0 and kc == 0: st.wait_vm(("B", 18))
            p, b = hz_reg(f)
            for j in range(4):
                u = (kc * 4 + j) * 4
                st.ins(f"v_mfma_f32_16x16x32_bf16 v[{acc(y,j)}:{acc(y,j)+3}], a[{u}:{u+3}], {rng(p,b)}, v[{acc(y,j)}:{acc(y,j)+3}]")
                for fn in fill.get(gi, []): fn()
                gi += 1
    assert all(k < gi for k in fill)
    st.ins("s_nop 7")
    for j in range(4):
        st.lg(f"ds_write_b128 v{V_EW1}, v[{acc(7,j)}:{acc(7,j)+3}] offset:{3 * 16384 + j * 1024}", ("W", 7))
    st.wait_lg(("W", 7))
    st.ins("s_barrier")
    for j in range(3):
        for p in range(4): m_read(1, p, j)
    for op in final_ops(1, 0): op()
    for p in range(4): m_read(1, p, 3)
    for part in range(1, 5):
        for op in final_ops(1, part): op()
    return st.resolve()

def emit_main(a, lines, scaled, tag):
    its = {}
    cur = "pre"; its[cur] = []
    for l in lines:
        if l.startswith("@"):
            cur = l[1:]; its[cur] = []
        elif l != "#pro":
            its[cur].append(l)
    assert its["it0"] == its["it1"] == its["it2"], "loop bodies differ"
    for l in its["pre"]: a(l)
    a(f"s_mov_b32 s{S_CNT}, 3")
    a.raw(".p2align 3")
    a.label(f"L2_loop{tag}")
    for l in its["it0"]: a(l)
    if scaled:
        for k in range(6): a(f"s_mov_b64 s[{S_R+2*k}:{S_R+2*k+1}], s[{S_R+4+2*k}:{S_R+5+2*k}]")
    a(f"s_sub_u32 s{S_CNT}, s{S_CNT}, 1")
    a(f"s_cmp_lg_u32 s{S_CNT}, 0")
    a(f"s_cbranch_scc1 L2_loop{tag}")
    for l in its["it3"]: a(l)
    for l in its["z2"]: a(l)
    a("s_endpgm")

def gen_k2(a, name, opt={}):
    kernel_begin(a, name)
    a("s_cmp_ge_u32 s2, 256")
    a("s_cbranch_scc1 L2_end")
    a("s_load_dwordx2 s[4:5], s[0:1], 64")
    a("s_load_dwordx2 s[6:7], s[0:1], 0")
    a("s_load_dwordx2 s[50:51], s[0:1], 48")
    a("v_lshrrev_b32 v19, 6, v0")
    a("v_and_b32 v20, 63, v0")
    a(f"v_lshlrev_b32 v{V_U0}, 4, v20")
    a(f"v_readfirstlane_b32 s{S_P}, v19")
    a(f"v_add_u32 v{V_U1}, 4096, v{V_U0}")
    a(f"v_add_u32 v{V_U2}, 8192, v{V_U0}")
    a("s_and_b32 s52, s2, 7"); a("s_lshr_b32 s53, s2, 3")
    a("s_and_b32 s54, s52, 1"); a("s_lshl_b32 s54, s54, 2"); a("s_and_b32 s58, s53, 3"); a("s_add_u32 s54, s54, s58")
    a("s_lshr_b32 s55, s52, 1"); a("s_lshl_b32 s55, s55, 5"); a("s_lshr_b32 s58, s53, 3"); a("s_lshl_b32 s58, s58, 3"); a("s_add_u32 s55, s55, s58")
    a("s_lshr_b32 s56, s53, 2"); a("s_and_b32 s56, s56, 1"); a("s_lshl_b32 s56, s56, 4")
    a("s_and_b32 s57, s55, 63")
    a("s_lshl_b32 s58, s54, 2"); a(f"s_add_u32 s58, s58, s{S_P}"); a(f"s_mul_i32 s{S_UOFF}, s58, {USTREAM}"); a(f"s_add_u32 s{S_UOFF}, s{S_UOFF}, {WS_U}")
    a(f"s_mov_b32 s{S_HOFF}, 0")
    a(f"s_lshl_b32 s{S_M0B}, s{S_P}, 10")
    a("s_waitcnt lgkmcnt(0)")
    srd(a, SRD_WS, 4, 0x10000000)
    def bl(step):
        st = Stream()
        for k in range(12): b_load(st, step, k)
        for l in st.resolve(): a(l)
        a(f"s_add_u32 s{S_UOFF}, s{S_UOFF}, 12288")
    bl(0)
    srd(a, SRD_H, 4, 8 << 20)
    a("s_lshl_b32 s58, s54, 6"); a(f"s_add_u32 s58, s58, {WS_SC}")
    a("s_add_u32 s60, s4, s58"); a("s_addc_u32 s61, s5, 0")
    a(f"s_load_dwordx16 s[{S_R}:{S_R+15}], s[60:61], 0")
    a("s_sub_u32 s59, s55, 1")
    a("s_sub_u32 s62, s57, 1")
    a("s_movk_i32 s63, 964"); a("s_movk_i32 s64, 3856"); a("s_movk_i32 s65, 688")
    for k in range(6):
        d = V_DMA + k
        a(f"v_add_u32 v21, {256*k}, v0")
        a("v_cmp_le_u32 vcc, s65, v21")
        a("v_subrev_u32 v22, s65, v21")
        a("v_mov_b32 v26, 0x80000000")
        a("v_cndmask_b32 v21, v21, v22, vcc")
        a("v_cndmask_b32 v23, 0, 1, vcc")
        a("v_mul_u32_u24 v22, s63, v21")
        a("v_lshrrev_b32 v22, 16, v22")
        a("v_mul_u32_u24 v24, 68, v22")
        a("v_sub_u32 v21, v21, v24")
        a("v_mul_u32_u24 v24, s64, v21")
        a("v_lshrrev_b32 v24, 16, v24")
        a("v_mul_u32_u24 v25, 17, v24")
        a("v_sub_u32 v21, v21, v25")
        a("v_lshrrev_b32 v25, 1, v24")
        a("v_and_b32 v24, 1, v24")
        a("v_lshl_add_u32 v23, v24, 1, v23")
        a("v_add_u32 v21, s56, v21")
        a("v_sub_u32 v21, v21, v25")
        a("v_lshlrev_b32 v25, 11, v25")
        a("v_lshl_add_u32 v25, v23, 9, v25")
        a("v_lshl_add_u32 v25, v21, 4, v25")
        a("v_add_u32 v23, s59, v22")
        a(f"v_lshl_add_u32 v{d}, v23, 16, v25")
        a("v_add_u32 v23, s62, v22")
        a("v_cmp_gt_u32 vcc, 10, v22")
        a("v_cmp_gt_u32 s[66:67], 32, v21")
        a("v_cmp_gt_u32 s[68:69], 64, v23")
        a("s_and_b64 vcc, vcc, s[66:67]")
        a("s_and_b64 vcc, vcc, s[68:69]")
        a("s_nop 0")
        a(f"v_cndmask_b32 v{d}, v26, v{d}, vcc")
    def dl(step):
        st = Stream()
        for k in range(6):
            dma_m0(st, step, k); st.ins("s_nop 0"); dma(st, step, k)
        for l in st.resolve(): a(l)
        a(f"s_add_u32 s{S_HOFF}, s{S_HOFF}, 4096")
    dl(0); bl(1); dl(1); bl(2); dl(2)
    srd(a, SRD_XF, 6, 8 << 20)
    srd(a, SRD_OUT, 50, 8 << 20)
    a("v_lshrrev_b32 v21, 4, v20")
    a("v_and_b32 v22, 15, v20")
    a("v_and_b32 v23, 1, v21"); a("v_mul_u32_u24 v23, 688, v23")
    a("v_lshrrev_b32 v24, 1, v21"); a("v_mul_u32_u24 v24, 17, v24")
    a("v_add3_u32 v23, v23, v24, v22"); a("v_lshlrev_b32 v23, 4, v23")
    a("s_mov_b32 s58, 0"); a(f"s_cmp_eq_u32 s{S_P}, 0"); a(f"s_cselect_b32 s58, {34*16}, s58"); a(f"s_cmp_eq_u32 s{S_P}, 2"); a(f"s_cselect_b32 s58, {35*16}, s58")
    a(f"s_mov_b32 s59, {35*16}"); a(f"s_cmp_eq_u32 s{S_P}, 2"); a("s_cselect_b32 s59, 0, s59"); a(f"s_cmp_eq_u32 s{S_P}, 3"); a("s_cselect_b32 s59, 16, s59")
    a(f"v_add_u32 v{V_LX0}, s58, v23"); a(f"v_add_u32 v{V_LY0}, s59, v23")
    a(f"v_add_u32 v{V_LX1}, {2*SLOT}, v{V_LX0}"); a(f"v_add_u32 v{V_LY1}, {2*SLOT}, v{V_LY0}")
    a(f"s_mov_b32 s{S_SIG}, 0xbc00bc00"); a(f"s_cmp_eq_u32 s{S_P}, 1"); a(f"s_cselect_b32 s{S_SIG}, 0x3c003c00, s{S_SIG}")
    a(f"s_lshl_b32 s58, s{S_P}, 12"); a(f"v_add_u32 v{V_EW0}, s58, v{V_U0}"); a(f"v_add_u32 v{V_EW1}, 0x10000, v{V_EW0}")
    a(f"s_lshl_b32 s58, s{S_P}, 14"); a(f"v_add_u32 v{V_ER0}, s58, v{V_U0}"); a(f"v_add_u32 v{V_ER1}, 0x10000, v{V_ER0}")
    a(f"s_add_u32 s58, s55, s{S_P}"); a("s_lshl_b32 s58, s58, 16"); a("s_lshl_b32 s59, s56, 11"); a("s_add_u32 s58, s58, s59")
    a("s_lshl_b32 s59, s54, 7"); a("s_add_u32 s58, s58, s59")
    a("v_lshlrev_b32 v22, 11, v22"); a("v_lshl_add_u32 v22, v21, 4, v22"); a(f"v_add_u32 v{V_OUT}, s58, v22")
    a(f"s_mov_b32 s{S_ROW4}, 0x40000")
    a(f"s_add_u32 s58, s{S_P}, 1"); a(f"s_cmp_eq_u32 s{S_P}, 0"); a("s_cselect_b32 s58, 0, s58"); a(f"s_cmp_eq_u32 s{S_P}, 3"); a("s_cselect_b32 s58, 1, s58")
    a("s_lshl_b32 s58, s58, 14"); a("s_lshl_b32 s59, s56, 9"); a("s_add_u32 s58, s58, s59"); a("s_lshl_b32 s59, s55, 16"); a("s_add_u32 s58, s58, s59")
    a(f"s_add_u32 s{S_HZOFF}, s58, {WS_HZ}")
    for i in range(128): a(f"v_mov_b32 v{V_ACC+i}, 0")
    a("s_waitcnt lgkmcnt(0)")
    a(f"s_mov_b32 s58, s{S_R}"); a(f"s_mov_b32 s59, s{S_R}")
    for k in range(1, 16):
        a(f"s_min_i32 s58, s58, s{S_R+k}"); a(f"s_max_i32 s59, s59, s{S_R+k}")
    a("s_sub_i32 s60, 117, s58"); a("s_max_i32 s60, s60, 1"); a("s_min_i32 s60, s60, 254"); a(f"s_lshl_b32 s{S_INV}, s60, 23")
    a("s_cmp_lg_u32 s58, s59")
    a("s_cbranch_scc1 L2_slow")
    emit_main(a, build_main(False, opt), False, "f")
    a.label("L2_slow")
    for k in range(16):
        r = S_R + k
        a(f"s_sub_i32 s60, s{r}, s58")
        a("s_sub_i32 s61, 15, s60"); a("s_lshl_b32 s61, s61, 10")
        a("s_sub_i32 s62, 24, s60"); a("s_lshl_b32 s62, 1, s62")
        a("s_cmp_lt_i32 s60, 15"); a("s_cselect_b32 s61, s61, s62")
        a("s_cmp_gt_i32 s60, 24"); a("s_cselect_b32 s61, 0, s61")
        a(f"s_mul_i32 s{r}, s61, 0x10001")
    emit_main(a, build_main(True, opt), True, "s")
    a.label("L2_end")
    a("s_endpgm")
```

```python
import sys
from asmlib import *
import k1gen, k2gen
def gen(path, opt={}):
    a = Asm()
    a.raw(HEADER + "; @launch kernel=cn_prep_kernel grid=(256,1,1) block=(256,1,1) lds=98304\n; @launch kernel=cn_conv_kernel grid=(256,1,1) block=(256,1,1) lds=131072")
    a.raw('.amdgcn_target "amdgcn-amd-amdhsa--gfx950"')
    k1gen.gen_k1(a, "cn_prep_kernel", opt)
    k2gen.gen_k2(a, "cn_conv_kernel", opt)
    kernel_desc(a, "cn_prep_kernel", 256 + 96, 256)
    kernel_desc(a, "cn_conv_kernel", 512, 256)
    open(path, "w").write(a.text())
if __name__ == "__main__":
    gen("standalone__controlnet__diffusion.s")
```

```python
from asmlib import *
from k2gen import Stream, H_HK, WS_H, WS_HZ, WS_U, USTREAM, WS_SC, WS_ST, stamp_lines, stamp_store

S_W = 3
SRD_C = 8; SRD_W = 12; SRD_X = 16; SRD_WS = 20; SRD_A = 24; SRD_B = 28; SRD_D = 32
S_WOFF, S_COFF, S_AOFF, S_BOFF, S_TMP, S_M4K, S_M1K = 36, 37, 38, 39, 40, 41, 42
S_XCD, S_JJ, S_R, S_NQ, S_CB, S_CP, S_NB = 54, 55, 56, 57, 58, 59, 60
LZ, LMX, LST = 131072, 135168, 135296
LDS_BYTES = LST + 4096

V_WD, V_CD0, V_CD1, V_AD, V_AD4, V_BD, V_XD0, V_XD1 = 1, 2, 3, 4, 5, 6, 7, 8
V_LANE, V_G, V_I = 10, 11, 12
V_T = 16
V_CF = 20
V_AF = 24
V_BT = 28
V_ST, V_SH, V_SZ, V_XR = 30, 31, 9, 0
V_WF = 32
V_TMP = 64
V_ACC = 128
V_ACW = 192
V_MU = 240
pr = lambda r: f"v[{r}:{r+1}]"

def gen_k1(a, name, opt={}):
    from k2gen import stamp_lines as sl0
    pst = opt.get("pst")
    def stamp_lines(opt, k, cyc=False, pro=False):
        if pst and k in (2, 3, 4, 5) and not pro: return []
        if pro and not pst: return []
        return sl0(opt, k, cyc)
    def acc(q, j): return V_ACC + (q * 4 + j) * 4
    def acw(t): return V_ACW + t * 4
    kernel_begin(a, name)
    for l in stamp_lines(opt, 0) + stamp_lines(opt, 8, True): a(l)
    a("s_cmp_ge_u32 s2, 256")
    a("s_cbranch_scc1 L1_end")
    a("s_load_dwordx4 s[4:7], s[0:1], 16")
    a("s_load_dwordx4 s[64:67], s[0:1], 32")
    a("s_load_dwordx2 s[68:69], s[0:1], 8")
    a("s_load_dwordx4 s[96:99], s[0:1], 56")
    a("v_lshrrev_b32 v13, 6, v0")
    a(f"v_and_b32 v{V_LANE}, 63, v0")
    a(f"v_lshrrev_b32 v{V_G}, 4, v{V_LANE}")
    a(f"v_readfirstlane_b32 s{S_W}, v13")
    a(f"v_and_b32 v{V_I}, 15, v{V_LANE}")
    a(f"s_and_b32 s{S_XCD}, s2, 7"); a(f"s_lshr_b32 s{S_JJ}, s2, 3")
    a(f"s_lshr_b32 s61, s{S_JJ}, 2")
    a(f"s_lshl_b32 s62, s{S_XCD}, 3"); a("s_add_u32 s62, s62, s61")
    a(f"s_and_b32 s{S_NQ}, s{S_JJ}, 3")
    a(f"s_lshr_b32 s63, s{S_W}, 1"); a(f"s_lshl_b32 s{S_R}, s62, 1"); a(f"s_add_u32 s{S_R}, s{S_R}, s63")
    a(f"s_lshl_b32 s{S_WOFF}, s61, 16"); a(f"s_lshl_b32 s{S_COFF}, s61, 7")
    a(f"s_lshl_b32 s{S_M4K}, s{S_W}, 12"); a(f"s_lshl_b32 s{S_M1K}, s{S_W}, 10")
    a(f"v_and_b32 v13, 2, v{V_G}"); a("v_lshlrev_b32 v13, 2, v13"); a(f"v_and_b32 v14, 1, v{V_G}"); a("v_or_b32 v13, v13, v14")
    a(f"v_xor_b32 v13, v13, v{V_I}"); a("v_lshlrev_b32 v13, 4, v13"); a(f"v_lshl_add_u32 v13, v{V_G}, 10, v13")
    a(f"s_lshl_b32 s63, s{S_NQ}, 8"); a(f"s_lshl_b32 s43, s{S_W}, 14"); a("s_add_u32 s63, s63, s43")
    a(f"v_add_u32 v{V_WD}, s63, v13")
    a(f"v_lshrrev_b32 v14, 3, v{V_LANE}"); a(f"v_and_b32 v15, 7, v{V_LANE}"); a("v_xor_b32 v13, v15, v14"); a("v_lshlrev_b32 v13, 4, v13")
    a("v_lshl_add_u32 v64, v14, 11, v13")
    a("v_lshl_add_u32 v65, v14, 10, v13")
    a(f"s_lshl_b32 s63, s{S_R}, 16"); a(f"s_and_b32 s43, s{S_W}, 1"); a("s_lshl_b32 s43, s43, 15"); a("s_add_u32 s43, s43, s63")
    a(f"v_add_u32 v{V_CD0}, s43, v64"); a(f"v_add_u32 v{V_CD1}, 0x4000, v{V_CD0}")
    a("s_waitcnt lgkmcnt(0)")
    for l in stamp_lines(opt, 2, pro=True): a(l)
    srd(a, SRD_W, 6, 512 * 1024)
    srd(a, SRD_C, 4, 8 << 20)
    st = Stream()
    I = st.ins
    def slot(K): return (K % 4) * 32768
    def d_gemm(P):
        l = []
        for m in range(4):
            def w(m=m):
                I(f"s_add_u32 m0, s{S_M4K}, {slot(P) + m * 1024}"); I(f"s_add_u32 s{S_TMP}, s{S_WOFF}, {m * 4096}")
                st.vm(f"buffer_load_dwordx4 v{V_WD}, s[{SRD_W}:{SRD_W+3}], s{S_TMP} offen lds", ("D", P))
                if m == 3: I(f"s_add_u32 s{S_WOFF}, s{S_WOFF}, 0x10000"); I(f"s_and_b32 s{S_WOFF}, s{S_WOFF}, 0x7ffff")
            def c(m=m):
                par, ph = m >> 1, m & 1
                I(f"s_add_u32 m0, s{S_M4K}, {slot(P) + 16384 + par * 2048 + ph * 1024}"); I(f"s_add_u32 s{S_TMP}, s{S_COFF}, {par * 1024}")
                st.vm(f"buffer_load_dwordx4 v{V_CD0 + ph}, s[{SRD_C}:{SRD_C+3}], s{S_TMP} offen lds", ("D", P))
                if m == 3: I(f"s_add_u32 s{S_COFF}, s{S_COFF}, 128"); I(f"s_and_b32 s{S_COFF}, s{S_COFF}, 0x3ff")
            l += [c, w]
        return l
    def d_x():
        l = []
        for n in range(8):
            def x(n=n):
                q, ph = n >> 1, n & 1
                I(f"s_add_u32 m0, s43, {n * 1024}"); I(f"s_mov_b32 s{S_TMP}, {(q >> 1) * 32768 + (q & 1) * 1024}")
                st.vm(f"buffer_load_dwordx4 v{V_XD0 + ph}, s[{SRD_X}:{SRD_X+3}], s{S_TMP} offen lds", ("D", 8))
            l.append(x)
        def z():
            I(f"s_add_u32 m0, s{S_M1K}, {LZ}"); I(f"s_lshl_b32 s{S_TMP}, s{S_CB}, 15")
            st.vm(f"buffer_load_dwordx4 v{V_BD}, s[{SRD_B}:{SRD_B+3}], s{S_TMP} offen lds", ("D", 8))
        return l + [z]
    def d_wt(K):
        l = []
        for m in range(5):
            def A(m=m):
                I(f"s_add_u32 m0, s{S_M1K}, {slot(K) + m * 4096}"); I(f"s_add_u32 s{S_TMP}, s{S_AOFF}, {m * 1048576}")
                st.vm(f"buffer_load_dwordx4 v{V_AD if m < 4 else V_AD4}, s[{SRD_A}:{SRD_A+3}], s{S_TMP} offen lds", ("D", K))
                if m == 4: I(f"s_add_u32 s{S_AOFF}, s{S_AOFF}, 128"); I(f"s_and_b32 s{S_AOFF}, s{S_AOFF}, 0x3ff")
            l.append(A)
        for m in range(2):
            def B(m=m):
                I(f"s_add_u32 m0, s{S_M1K}, {slot(K) + 20480 + m * 4096}"); I(f"s_add_u32 s{S_TMP}, s{S_BOFF}, {m * 32768}")
                st.vm(f"buffer_load_dwordx4 v{V_BD}, s[{SRD_B}:{SRD_B+3}], s{S_TMP} offen lds", ("D", K))
                if m == 1: I(f"s_add_u32 s{S_BOFF}, s{S_BOFF}, 0x10000"); I(f"s_and_b32 s{S_BOFF}, s{S_BOFF}, 0x7ffff")
            l.append(B)
        return l
    def dlist(K): return d_gemm(K) if K < 8 else (d_x() if K == 8 else (d_wt(K) if K <= 16 else []))
    for fn in dlist(0): fn()
    for l in stamp_lines(opt, 3, pro=True): I(l)
    b = Asm(); srd(b, SRD_X, 68, 8 << 20); srd(b, SRD_A, 66, 9 * 512 * 1024); srd(b, SRD_B, 64, 512 * 1024); srd(b, SRD_WS, 98, 0x10000000); srd(b, SRD_D, 96, 256)
    for l in b.lines: I(l.strip())
    I(f"s_lshr_b32 s{S_CB}, s{S_JJ}, 4"); I(f"s_lshl_b32 s63, s{S_XCD}, 1"); I(f"s_add_u32 s{S_CB}, s{S_CB}, s63")
    I(f"s_lshr_b32 s{S_CP}, s{S_JJ}, 3"); I(f"s_and_b32 s{S_CP}, s{S_CP}, 1"); I(f"s_and_b32 s{S_NB}, s{S_JJ}, 7")
    tch = opt.get("touch", "cx")
    if tch:
        I(f"v_lshrrev_b32 v66, 1, v{V_LANE}"); I(f"v_and_b32 v67, 1, v{V_LANE}"); I("v_lshlrev_b32 v67, 7, v67"); I("v_lshl_add_u32 v66, v66, 10, v67")
        I("s_lshl_b32 s63, s62, 17"); I(f"s_lshl_b32 s{S_TMP}, s{S_W}, 15"); I(f"s_add_u32 s63, s63, s{S_TMP}"); I(f"s_lshl_b32 s{S_TMP}, s{S_NQ}, 8"); I(f"s_add_u32 s63, s63, s{S_TMP}")
        if "c" in tch: st.vm(f"buffer_load_dword v68, v66, s[{SRD_C}:{SRD_C+3}], s63 offen", ("T", 0))
    for fn in dlist(1): fn()
    if "x" in tch: st.vm(f"buffer_load_dword v69, v66, s[{SRD_X}:{SRD_X+3}], s63 offen", ("T", 1))
    for l in stamp_lines(opt, 4, pro=True): I(l)
    g, i, lane = f"v{V_G}", f"v{V_I}", f"v{V_LANE}"
    I(f"v_lshrrev_b32 v13, 2, {i}"); I("v_and_b32 v14, 2, v13"); I("v_lshlrev_b32 v14, 2, v14"); I("v_and_b32 v15, 1, v13"); I("v_or_b32 v14, v14, v15")
    I(f"v_and_b32 v15, 3, {i}"); I("v_lshlrev_b32 v15, 1, v15"); I(f"s_and_b32 s63, s{S_W}, 1"); I("s_lshl_b32 s63, s63, 3"); I("v_or_b32 v15, s63, v15")
    I("v_xor_b32 v14, v14, v15"); I("v_lshlrev_b32 v14, 4, v14"); I(f"v_lshl_add_u32 v15, {g}, 3, v13"); I(f"v_lshl_add_u32 v{V_T}, v15, 8, v14")
    I(f"v_xor_b32 v{V_T+1}, 16, v{V_T}"); I(f"v_add_u32 v{V_T+2}, 0x10000, v{V_T}"); I(f"v_add_u32 v{V_T+3}, 0x10000, v{V_T+1}")
    I("v_lshrrev_b32 v13, 1, v13"); I(f"s_lshr_b32 s63, s{S_W}, 1"); I("v_xor_b32 v13, s63, v13"); I("v_lshlrev_b32 v13, 6, v13")
    I(f"v_and_b32 v14, 3, {i}"); I("v_lshl_add_u32 v13, v14, 4, v13"); I("v_lshl_add_u32 v13, v15, 7, v13")
    I(f"s_and_b32 s63, s{S_W}, 1"); I("s_lshl_b32 s63, s63, 3"); I("s_add_u32 s63, s63, 20480"); I(f"v_add_u32 v{V_BT}, s63, v13"); I(f"v_add_u32 v{V_BT+1}, 0x10000, v{V_BT}")
    I(f"v_and_b32 v13, 7, {i}"); I(f"v_xor_b32 v14, {g}, v13"); I("v_lshlrev_b32 v14, 4, v14"); I(f"v_lshl_add_u32 v{V_AF}, {i}, 7, v14")
    I(f"v_xor_b32 v{V_AF+1}, 64, v{V_AF}"); I(f"v_add_u32 v{V_AF+2}, 0x10000, v{V_AF}"); I(f"v_add_u32 v{V_AF+3}, 0x10000, v{V_AF+1}")
    I(f"s_lshr_b32 s63, s{S_W}, 1"); I("s_lshl_b32 s63, s63, 13"); I("s_add_u32 s63, s63, 16384")
    for k in range(4): I(f"v_add_u32 v{V_CF+k}, s63, v{V_AF+k}")
    I(f"v_lshlrev_b32 v14, 1, {g}"); I("v_xor_b32 v14, v14, v13"); I("v_lshlrev_b32 v14, 4, v14"); I(f"v_lshl_add_u32 v14, {i}, 7, v14")
    I(f"s_lshl_b32 s43, s{S_W}, 13"); I(f"v_add_u32 v{V_XR}, s43, v14")
    I(f"s_lshl_b32 s63, s{S_R}, 16"); I(f"s_lshl_b32 s{S_TMP}, s{S_NQ}, 8"); I(f"s_add_u32 s63, s63, s{S_TMP}")
    I(f"s_and_b32 s{S_TMP}, s{S_W}, 1"); I(f"s_lshl_b32 s{S_TMP}, s{S_TMP}, 7"); I(f"s_add_u32 s63, s63, s{S_TMP}")
    I(f"v_add_u32 v{V_XD0}, s63, v64"); I(f"v_add_u32 v{V_XD1}, 0x4000, v{V_XD0}")
    I(f"s_lshr_b32 s63, s{S_W}, 1"); I("s_lshl_b32 s63, s63, 19"); I(f"s_lshl_b32 s{S_TMP}, s{S_CB}, 15"); I(f"s_add_u32 s63, s63, s{S_TMP}")
    I(f"s_lshl_b32 s{S_TMP}, s{S_CP}, 14"); I(f"s_add_u32 s63, s63, s{S_TMP}"); I(f"s_and_b32 s{S_TMP}, s{S_W}, 1"); I(f"s_lshl_b32 s{S_TMP}, s{S_TMP}, 13"); I(f"s_add_u32 s63, s63, s{S_TMP}")
    I(f"v_add_u32 v{V_AD}, s63, v65")
    I(f"s_cmp_lt_u32 s{S_W}, 2"); I("s_cselect_b32 s63, 0, 0x80000000"); I(f"v_or_b32 v{V_AD4}, s63, v{V_AD}")
    I(f"s_lshl_b32 s{S_AOFF}, s{S_NB}, 7"); I(f"s_lshl_b32 s{S_BOFF}, s{S_NB}, 16")
    I(f"v_lshrrev_b32 v13, 3, {lane}"); I("v_lshrrev_b32 v14, 1, v13"); I("v_and_b32 v14, 1, v14"); I("v_lshlrev_b32 v14, 2, v14")
    I(f"v_and_b32 v15, 7, {lane}"); I("v_xor_b32 v14, v14, v15"); I("v_lshlrev_b32 v14, 4, v14"); I("v_lshl_add_u32 v14, v13, 10, v14")
    I(f"s_lshl_b32 s63, s{S_W}, 13"); I(f"s_lshl_b32 s{S_TMP}, s{S_NB}, 7"); I(f"s_add_u32 s63, s63, s{S_TMP}"); I(f"v_add_u32 v{V_BD}, s63, v14")
    for fn in dlist(2): fn()
    I(f"s_lshl_b32 s63, s{S_NQ}, 1"); I(f"s_and_b32 s{S_TMP}, s{S_W}, 1"); I(f"s_add_u32 s63, s63, s{S_TMP}"); I(f"s_mul_i32 s63, s63, {8 * H_HK}")
    I(f"s_mul_i32 s{S_TMP}, s{S_R}, 1088"); I(f"s_add_u32 s63, s63, s{S_TMP}")
    I(f"v_lshrrev_b32 v13, 1, {g}"); I(f"s_mov_b32 s{S_TMP}, {4 * H_HK}"); I(f"v_mul_lo_u32 v13, s{S_TMP}, v13")
    I(f"v_and_b32 v14, 1, {g}"); I("v_mul_u32_u24 v14, 272, v14"); I("v_add3_u32 v13, v13, v14, s63")
    I(f"v_lshl_add_u32 v{V_ST}, {i}, 4, v13")
    I("v_mov_b32 v14, 0x80000000")
    for iv, off in ((0, 256), (15, 2 * H_HK + 544), (1, 544), (14, 2 * H_HK + 256)):
        I(f"v_cmp_eq_u32 vcc, {iv}, {i}"); I(f"v_add_u32 v15, {off}, v13"); I("s_nop 0")
        I("v_cndmask_b32 v14, v14, v15, vcc")
        if iv == 0: I("s_mov_b64 s[44:45], vcc")
        if iv == 15: I("s_mov_b64 s[46:47], vcc")
    I(f"v_mov_b32 v{V_SH}, v14")
    I(f"s_lshl_b32 s63, s{S_R}, 16"); I(f"s_lshr_b32 s{S_TMP}, s{S_NQ}, 1"); I(f"s_lshl_b32 s{S_TMP}, s{S_TMP}, 15"); I(f"s_add_u32 s63, s63, s{S_TMP}")
    I(f"s_and_b32 s{S_TMP}, s{S_NQ}, 1"); I(f"s_lshl_b32 s{S_TMP}, s{S_TMP}, 12"); I(f"s_add_u32 s63, s63, s{S_TMP}")
    I(f"s_and_b32 s{S_TMP}, s{S_W}, 1"); I(f"s_lshl_b32 s{S_TMP}, s{S_TMP}, 11"); I(f"s_add_u32 s63, s63, s{S_TMP}"); I(f"s_add_u32 s63, s63, {WS_HZ}")
    I(f"v_lshlrev_b32 v13, 9, {g}"); I(f"v_lshl_add_u32 v13, {i}, 4, v13"); I(f"v_add_u32 v{V_SZ}, s63, v13")
    I(f"s_mov_b32 s48, {H_HK}"); I(f"s_mov_b32 s49, {2 * H_HK}"); I(f"s_mov_b32 s50, {3 * H_HK}")
    I("s_mov_b32 s51, 0x4000"); I("s_mov_b32 s52, 0x2000"); I("s_mov_b32 s53, 0x6000")
    for k in range(64): I(f"v_mov_b32 v{V_ACC+k}, 0")
    for k in range(36): I(f"v_mov_b32 v{V_ACW+k}, 0")

    def wread(s, j, hh):
        K = s >> 1
        r = V_WF + (s % 2) * 16 + j * 4 + hh * 2
        st.lg(f"ds_read_b64_tr_b16 v[{r}:{r+1}], v{V_T + ((K % 4) >> 1) * 2 + (j >> 1)} offset:{(K % 2) * 32768 + (s & 1) * 8192 + hh * 1024 + (j & 1) * 8}", ("F", s))
    def cread(s, q):
        K = s >> 1
        r = (s % 2) * 16 + q * 4
        st.lg(f"ds_read_b128 a[{r}:{r+3}], v{V_CF + ((K % 4) >> 1) * 2 + (s & 1)} offset:{(K % 2) * 32768 + q * 2048}", ("F", s))
    def aread(s, t):
        K = 9 + (s >> 1)
        r = (s % 2) * 36 + t * 4
        st.lg(f"ds_read_b128 a[{r}:{r+3}], v{V_AF + ((K % 4) >> 1) * 2 + (s & 1)} offset:{(K % 2) * 32768 + t * 2048}", ("G", s))
    def bread(s, hh):
        K = 9 + (s >> 1)
        r = V_WF + (s % 2) * 4 + hh * 2
        st.lg(f"ds_read_b64_tr_b16 v[{r}:{r+1}], v{V_BT + ((K % 4) >> 1)} offset:{(K % 2) * 32768 + (s & 1) * 4096 + hh * 512}", ("G", s))
    for l in stamp_lines(opt, 5, pro=True): I(l)
    st.wait_vm(("D", 0))
    I("s_barrier")
    for l in stamp_lines(opt, 1): I(l)
    for j in range(4): wread(0, j, 0); wread(0, j, 1)
    for q in range(4): cread(0, q)
    fill = {}
    def at(idx, fn): fill.setdefault(idx, []).append(fn)
    def spread(fns, lo, hi):
        for n, fn in enumerate(fns): at(lo + (n * (hi - lo)) // max(1, len(fns)), fn)
    spread(dlist(3), 0, 14)
    for s in range(16):
        base = s * 16
        if s & 1:
            K = (s + 1) >> 1
            if K < 8: at(base, lambda K=K: st.wait_vm(("D", K)))
            at(base, lambda: I("s_barrier"))
            spread(dlist(K + 3), base + 1, base + (30 if s < 15 else 15))
        if s + 1 < 16:
            for e in range(8): at(base + 1 + e, lambda s=s, e=e: wread(s + 1, e >> 1, e & 1))
            for q in range(4): at(base + 9 + q, lambda s=s, q=q: cread(s + 1, q))
    XV = V_TMP
    I_x = lambda q, jp: st.lg(f"ds_read_b128 v[{XV+(q*2+jp)*4}:{XV+(q*2+jp)*4+3}], v{V_XR if jp == 0 else 13} offset:{q * 2048}", ("XR", q))
    at(15 * 16 + 1, lambda: I(f"v_xor_b32 v13, 16, v{V_XR}"))
    at(15 * 16 + 2, lambda: st.wait_vm(("D", 8)))
    for n in range(8): at(15 * 16 + 3 + n, lambda n=n: I_x(n >> 1, n & 1))
    gi = 0
    for s in range(16):
        st.wait_lg(("F", s))
        for j in range(4):
            for q in range(4):
                wr = V_WF + (s % 2) * 16 + j * 4; c = (s % 2) * 16 + q * 4
                I(f"v_mfma_f32_16x16x32_bf16 v[{acc(q,j)}:{acc(q,j)+3}], v[{wr}:{wr+3}], a[{c}:{c+3}], v[{acc(q,j)}:{acc(q,j)+3}]")
                for fn in fill.get(gi, []): fn()
                gi += 1
    I("s_nop 7")
    for l in stamp_lines(opt, 2): I(l)
    T = V_TMP + 32
    SUM = V_WF
    for q in range(4):
        st.wait_lg(("XR", q))
        for jp in range(2):
            for d in range(4):
                x = XV + (q * 2 + jp) * 4 + d
                y = acc(q, 2 * jp + (d >> 1)) + 2 * (d & 1)
                t = T + ((jp * 4 + d) % 8) * 2
                I(f"v_lshlrev_b32 v{t}, 16, v{x}"); I(f"v_and_b32 v{t+1}, 0xffff0000, v{x}")
                I(f"v_pk_add_f32 {pr(y)}, {pr(y)}, {pr(t)}")
        s0 = SUM + q * 4
        I(f"v_pk_add_f32 {pr(s0)}, {pr(acc(q,0))}, {pr(acc(q,0)+2)}"); I(f"v_pk_add_f32 {pr(s0+2)}, {pr(acc(q,1))}, {pr(acc(q,1)+2)}")
        for j in (2, 3):
            for rp in range(2): I(f"v_pk_add_f32 {pr(s0+2*rp)}, {pr(s0+2*rp)}, {pr(acc(q,j)+2*rp)}")
        I(f"v_pk_add_f32 {pr(s0)}, {pr(s0)}, {pr(s0+2)}"); I(f"v_add_f32 v{s0}, v{s0}, v{s0+1}")
    for q in range(4): I(f"v_mov_b32 v{SUM+q*4+1}, v{SUM+q*4}")
    I("s_nop 0")
    for q in range(4): I(f"v_permlane32_swap_b32 v{SUM+q*4}, v{SUM+q*4+1}")
    for q in range(4): I(f"v_add_f32 v{SUM+q*4}, v{SUM+q*4}, v{SUM+q*4+1}")
    for q in range(4): I(f"v_mov_b32 v{SUM+q*4+1}, v{SUM+q*4}")
    I("s_nop 0")
    for q in range(4): I(f"v_permlane16_swap_b32 v{SUM+q*4}, v{SUM+q*4+1}")
    I("s_mov_b32 s63, 0xbc800000")
    for q in range(4): I(f"v_add_f32 v{SUM+q*4}, v{SUM+q*4}, v{SUM+q*4+1}")
    for q in range(4): I(f"v_mul_f32 v{V_MU+2*q}, s63, v{SUM+q*4}")
    HS = XV
    sq = ["0", "s51", "s52", "s53"]
    fl = opt.get("stflag", "")
    def hz_store(q, jp):
        h = HS + (q * 2 + jp) * 4
        st.vm(f"buffer_store_dwordx4 v[{h}:{h+3}], v{V_SZ}, s[{SRD_WS}:{SRD_WS+3}], {sq[q]} offen offset:{jp*256} {fl}", ("HZ", 0))
    I(f"s_cmp_ge_u32 s{S_NQ}, 2")
    I("s_cbranch_scc1 L1_hz_sd")
    n0 = len(st.items)
    for q in range(4):
        ng = "-" if q & 1 else ""
        for jp in range(2):
            h = HS + (q * 2 + jp) * 4
            for d in range(4):
                y = acc(q, 2 * jp + (d >> 1)) + 2 * (d & 1)
                I(f"v_cvt_pk_bf16_f32 v{h+d}, {ng}v{y}, {ng}v{y+1}")
            hz_store(q, jp)
    st.items[n0:] = [("i", t, None) if k == "vm" else (k, t, tg) for k, t, tg in st.items[n0:]]
    I("s_branch L1_hz_done")
    I("L1_hz_sd:")
    for qq in range(2):
        e, o = 2 * qq, 2 * qq + 1
        for jp in range(2):
            for d in range(4):
                ye = acc(e, 2 * jp + (d >> 1)) + 2 * (d & 1); yo = acc(o, 2 * jp + (d >> 1)) + 2 * (d & 1)
                ts = T + d * 4
                I(f"v_pk_mul_f32 {pr(ts)}, {pr(ye)}, 0.5 op_sel_hi:[1,0]")
                I(f"v_pk_fma_f32 {pr(ts+2)}, {pr(yo)}, -0.5, {pr(ts)} op_sel_hi:[1,0,1]")
                I(f"v_pk_fma_f32 {pr(ts)}, {pr(yo)}, 0.5, {pr(ts)} op_sel_hi:[1,0,1]")
            for sel in range(2):
                h = HS + ((2 * qq + sel) * 2 + jp) * 4
                for d in range(4): I(f"v_cvt_pk_bf16_f32 v{h+d}, v{T + d*4 + sel*2}, v{T + d*4 + sel*2 + 1}")
                hz_store(2 * qq + sel, jp)
    I("L1_hz_done:")
    for q in range(4):
        s0 = SUM + q * 4
        for j in range(4):
            for rp in range(2):
                y = acc(q, j) + 2 * rp
                I(f"v_pk_add_f32 {pr(y)}, {pr(y)}, {pr(V_MU+2*q)} op_sel_hi:[1,0]")
                if j == 0: I(f"v_pk_mul_f32 {pr(s0+2*rp)}, {pr(y)}, {pr(y)}")
                else: I(f"v_pk_fma_f32 {pr(s0+2*rp)}, {pr(y)}, {pr(y)}, {pr(s0+2*rp)}")
        I(f"v_pk_add_f32 {pr(s0)}, {pr(s0)}, {pr(s0+2)}"); I(f"v_add_f32 v{s0}, v{s0}, v{s0+1}")
    s_ = [SUM + q * 4 for q in range(4)]
    I(f"v_cmp_eq_u32 vcc, 1, {g}"); I(f"v_mov_b32 v{T}, v{V_MU}")
    I(f"v_permlane32_swap_b32 v{s_[0]}, v{s_[1]}"); I(f"v_cndmask_b32 v{T}, v{T}, v{V_MU+4}, vcc"); I(f"v_cmp_eq_u32 vcc, 2, {g}")
    I(f"v_permlane32_swap_b32 v{s_[2]}, v{s_[3]}")
    I(f"v_add_f32 v{s_[0]}, v{s_[0]}, v{s_[1]}"); I(f"v_add_f32 v{s_[2]}, v{s_[2]}, v{s_[3]}")
    I(f"v_cndmask_b32 v{T}, v{T}, v{V_MU+2}, vcc"); I(f"v_cmp_eq_u32 vcc, 3, {g}")
    I(f"v_permlane16_swap_b32 v{s_[0]}, v{s_[2]}")
    I(f"v_add_f32 v{T+1}, v{s_[0]}, v{s_[2]}")
    I(f"v_cndmask_b32 v{T}, v{T}, v{V_MU+6}, vcc")
    I(f"v_lshrrev_b32 v13, 1, {g}"); I(f"v_and_b32 v14, 1, {g}"); I("v_lshl_add_u32 v13, v14, 1, v13"); I("v_lshlrev_b32 v13, 7, v13"); I(f"v_lshl_add_u32 v13, {i}, 3, v13")
    I(f"s_lshl_b32 s63, s{S_NQ}, 1"); I(f"s_and_b32 s{S_TMP}, s{S_W}, 1"); I(f"s_add_u32 s63, s63, s{S_TMP}"); I("s_lshl_b32 s63, s63, 9")
    I(f"s_lshl_b32 s61, s{S_R}, 12"); I(f"s_add_u32 s61, s61, {WS_ST}"); I("s_add_u32 s63, s63, s61")
    st.vm(f"buffer_store_dwordx2 {pr(T)}, v13, s[{SRD_WS}:{SRD_WS+3}], s63 offen sc1", ("SS", 0))
    for l in stamp_lines(opt, 3): I(l)
    st.wait_vm(("D", 9))
    I("s_barrier")
    for hh in range(2): bread(0, hh)
    for t in range(9): aread(0, t)
    fill = {}
    spread(dlist(12), 0, 8)
    I(f"s_lshl_b32 s62, s62, 2")
    def flag():
        I(f"s_cmp_eq_u32 s{S_W}, 0"); I("s_cbranch_scc0 L1_noflag")
        I(f"s_add_u32 s{S_TMP}, s62, s{S_NQ}"); I("v_mov_b32 v13, 1"); I(f"v_mov_b32 v14, s{S_TMP}")
        I(f"buffer_store_byte v13, v14, s[{SRD_D}:{SRD_D+3}], 0 offen sc1")
        I("L1_noflag:")
    FP = opt.get("flagpair", 2)
    for s in range(16):
        base = s * 9
        if s & 1 and s < 15:
            K = 9 + ((s + 1) >> 1)
            at(base, lambda K=K: st.wait_vm(("D", K)))
            if K == 9 + FP: at(base, lambda: st.wait_vm(("SS", 0)))
            at(base, lambda: I("s_barrier"))
            if K == 9 + FP: at(base, flag)
            spread(dlist(K + 3), base + 1, base + 17)
        if s + 1 < 16:
            for hh in range(2): at(base + 1, lambda s=s, hh=hh: bread(s + 1, hh))
            for t in range(9): at(base + 1 + (t * 6) // 9, lambda s=s, t=t: aread(s + 1, t))
    ZF = V_WF + 8
    at(13 * 9 + 7, lambda: I(f"v_add_u32 v13, {LZ - 20480}, v{V_BT}"))
    at(12 * 9 + 8, lambda: I("v_mov_b32 v15, s62"))
    at(13 * 9 + 2, lambda: st.vm(f"buffer_load_dword v15, v15, s[{SRD_D}:{SRD_D+3}], 0 offen sc1", ("PL", 0)))
    for hh in range(2): at(15 * 9 + 1 + hh, lambda hh=hh: st.lg(f"ds_read_b64_tr_b16 v[{ZF+2*hh}:{ZF+2*hh+1}], v13 offset:{hh * 512}", ("ZR", 0)))
    gi = 0
    for s in range(16):
        st.wait_lg(("G", s))
        for t in range(9):
            ar = (s % 2) * 36 + t * 4; br = V_WF + (s % 2) * 4
            I(f"v_mfma_f32_16x16x32_bf16 v[{acw(t)}:{acw(t)+3}], a[{ar}:{ar+3}], v[{br}:{br+3}], v[{acw(t)}:{acw(t)+3}]")
            for fn in fill.get(gi, []): fn()
            gi += 1
    for l in stamp_lines(opt, 4): I(l)
    ufl = opt.get("ustflag", "")
    I(f"s_mul_i32 s63, s{S_CP}, 3"); I(f"s_add_u32 s{S_TMP}, s{S_CP}, 1"); I(f"s_cmp_lt_u32 s{S_CB}, 8"); I(f"s_cselect_b32 s63, s63, s{S_TMP}")
    I(f"s_lshl_b32 s{S_TMP}, s{S_NB}, 2"); I(f"s_add_u32 s63, s63, s{S_TMP}"); I(f"s_mul_i32 s63, s63, {USTREAM}")
    I(f"s_and_b32 s{S_TMP}, s{S_CB}, 7"); I(f"s_lshl_b32 s{S_TMP}, s{S_TMP}, 12"); I(f"s_add_u32 s63, s63, s{S_TMP}"); I(f"s_add_u32 s63, s63, s{S_M1K}")
    I(f"s_add_u32 s63, s63, {WS_U + 196608}")
    I(f"v_lshlrev_b32 v14, 4, {lane}")
    st.wait_lg(("ZR", 0))
    st.vm(f"buffer_store_dwordx4 v[{ZF}:{ZF+3}], v14, s[{SRD_WS}:{SRD_WS+3}], s63 offen {ufl}", ("US", 0))
    U1 = V_ACW + 36
    for di in range(3):
        for rp in range(2):
            g0, g1, g2 = [acw(di * 3 + dj) + 2 * rp for dj in range(3)]
            u = U1 + di * 4 + 2 * rp
            I(f"v_pk_add_f32 {pr(T)}, {pr(g0)}, {pr(g2)}")
            I(f"v_pk_mul_f32 {pr(T)}, {pr(T)}, 0.5 op_sel_hi:[1,0]")
            I(f"v_pk_fma_f32 {pr(u)}, {pr(g1)}, 0.5, {pr(T)} op_sel_hi:[1,0,1]")
            I(f"v_pk_fma_f32 {pr(g1)}, {pr(g1)}, -0.5, {pr(T)} op_sel_hi:[1,0,1]")
    def ureg(p, di): return {0: acw(di * 3), 1: U1 + di * 4, 2: acw(di * 3 + 1), 3: acw(di * 3 + 2)}[p]
    M = T
    I(f"v_max3_f32 v{M}, |v{V_ACW}|, |v{V_ACW+1}|, |v{V_ACW+2}|"); I(f"v_max3_f32 v{M+1}, |v{V_ACW+3}|, |v{V_ACW+4}|, |v{V_ACW+5}|")
    for n in range(21):
        r = V_ACW + 6 + 2 * n
        I(f"v_max3_f32 v{M + (n & 1)}, |v{r}|, |v{r+1}|, v{M + (n & 1)}")
    I(f"v_max_f32 v{M}, v{M}, v{M+1}")
    for sh in (1, 2, 4, 8):
        I("s_nop 1"); I(f"v_max_f32_dpp v{M}, v{M}, v{M} row_ror:{sh} row_mask:0xf bank_mask:0xf")
    I(f"v_mov_b32 v{M+1}, v{M}"); I("s_nop 1")
    I(f"v_permlane32_swap_b32 v{M}, v{M+1}"); I(f"v_max_f32 v{M}, v{M}, v{M+1}")
    I(f"v_mov_b32 v{M+1}, v{M}"); I("s_nop 1")
    I(f"v_permlane16_swap_b32 v{M}, v{M+1}"); I(f"v_max_f32 v{M}, v{M}, v{M+1}")
    I(f"s_lshl_b32 s63, s{S_W}, 2"); I(f"s_add_u32 s63, s63, {LMX}"); I(f"v_mov_b32 v{M+1}, s63")
    st.lg(f"ds_write_b32 v{M+1}, v{M}", ("MW", 0))
    st.wait_vm(("PL", 0))
    I("L1_poll:")
    I("v_readfirstlane_b32 s63, v15")
    I("s_nop 3")
    I("s_cmp_eq_u32 s63, 0x01010101")
    I("s_cbranch_scc1 L1_polled")
    I("s_sleep 2")
    I("v_mov_b32 v15, s62")
    I(f"buffer_load_dword v15, v15, s[{SRD_D}:{SRD_D+3}], 0 offen sc1")
    I("s_waitcnt vmcnt(0)")
    I("s_branch L1_poll")
    I("L1_polled:")
    st.wait_lg(("MW", 0))
    I("s_barrier")
    SV = V_TMP
    for k in range(4):
        st.vm(f"buffer_load_dwordx4 v[{SV+4*k}:{SV+4*k+3}], v14, s[{SRD_WS}:{SRD_WS+3}], s61 offen offset:{k*1024} sc1", ("SL", 0))
    I(f"v_mov_b32 v13, {LMX}")
    st.lg(f"ds_read_b128 v[{M}:{M+3}], v13", ("MR", 0))
    st.wait_lg(("MR", 0))
    I(f"v_max3_f32 v{M}, v{M}, v{M+1}, v{M+2}"); I(f"v_max_f32 v{M}, v{M}, v{M+3}")
    I("s_nop 0")
    I(f"v_readfirstlane_b32 s63, v{M}")
    I("s_nop 3")
    I("s_lshr_b32 s63, s63, 23")
    I("s_sub_i32 s63, 143, s63"); I("s_and_b32 s63, s63, -4"); I("s_sub_i32 s63, s63, 2"); I("s_min_i32 s63, s63, 102")
    I("s_add_i32 s64, s63, 127"); I("s_lshl_b32 s64, s64, 23"); I("s_mov_b32 s65, s64")
    I(f"s_mul_i32 s66, s{S_NB}, {4 * USTREAM}"); I(f"s_mul_i32 s{S_TMP}, s{S_CB}, 12288"); I(f"s_add_u32 s66, s66, s{S_TMP}"); I(f"s_add_u32 s66, s66, s{S_M1K}")
    I(f"s_lshl_b32 s{S_TMP}, s{S_CP}, 9"); I(f"s_add_u32 s66, s66, s{S_TMP}"); I(f"s_add_u32 s66, s66, {WS_U}")
    I(f"v_and_b32 v13, 1, {g}"); I(f"v_mul_u32_u24 v13, {USTREAM}, v13"); I(f"v_lshrrev_b32 v15, 1, {g}"); I("v_lshl_add_u32 v13, v15, 8, v13"); I(f"v_lshl_add_u32 v13, {i}, 4, v13")
    n = 0
    for pp in range(2):
        for di in range(3):
            h = T + 8 + (n % 3) * 4; n += 1
            for k in range(2):
                u = ureg(2 * pp + k, di)
                I(f"v_pk_mul_f32 {pr(u)}, {pr(u)}, s[64:65]"); I(f"v_pk_mul_f32 {pr(u+2)}, {pr(u+2)}, s[64:65]")
                I(f"v_cvt_pk_f16_f32 v{h+2*k}, v{u}, v{u+1}"); I(f"v_cvt_pk_f16_f32 v{h+2*k+1}, v{u+2}, v{u+3}")
            I(f"s_add_u32 s{S_TMP}, s66, {pp * 2 * USTREAM + di * 4096}"); I("s_nop 0")
            I(f"v_permlane16_swap_b32 v{h}, v{h+2}"); I(f"v_permlane16_swap_b32 v{h+1}, v{h+3}")
            st.vm(f"buffer_store_dwordx4 v[{h}:{h+3}], v13, s[{SRD_WS}:{SRD_WS+3}], s{S_TMP} offen {ufl}", ("US", 1))
    I(f"s_lshl_b32 s66, s{S_NB}, 5"); I(f"s_lshl_b32 s{S_TMP}, s{S_CB}, 1"); I(f"s_add_u32 s66, s66, s{S_TMP}"); I(f"s_add_u32 s66, s66, s{S_CP}")
    I("s_lshl_b32 s66, s66, 2"); I(f"s_add_u32 s66, s66, {WS_SC}")
    I(f"v_mov_b32 v{M}, s63"); I(f"v_mov_b32 v{M+1}, s66")
    st.vm(f"buffer_store_dword v{M}, v{M+1}, s[{SRD_WS}:{SRD_WS+3}], 0 offen", ("US", 2))
    for l in stamp_lines(opt, 5): I(l)
    st.wait_vm(("SL", 0))
    A_, B_ = T, T + 2
    for e, dst in ((0, A_), (2, B_)):
        I(f"v_pk_add_f32 {pr(dst)}, {pr(SV+e)}, {pr(SV+4+e)}"); I(f"v_pk_add_f32 {pr(dst+4)}, {pr(SV+8+e)}, {pr(SV+12+e)}")
    for dst in (A_, B_): I(f"v_pk_add_f32 {pr(dst)}, {pr(dst)}, {pr(dst+4)}")
    for k in range(4): I(f"v_mov_b32 v{T+4+k}, v{T+k}")
    I("s_nop 0")
    for k in range(4): I(f"v_permlane32_swap_b32 v{T+k}, v{T+4+k}")
    I(f"v_pk_add_f32 {pr(A_)}, {pr(A_)}, {pr(T+4)}"); I(f"v_pk_add_f32 {pr(B_)}, {pr(B_)}, {pr(T+6)}")
    I(f"v_mul_f32 v{A_}, 0x3e000000, v{A_}"); I(f"v_mul_f32 v{B_}, 0x3e000000, v{B_}")
    for e, src, dd in ((0, A_, T + 4), (2, B_, T + 5)):
        for k in range(4):
            I(f"v_sub_f32 v{SV+4*k+e}, v{SV+4*k+e}, v{src}")
        I(f"v_mul_f32 v{dd}, v{SV+e}, v{SV+e}")
        for k in range(1, 4): I(f"v_fmac_f32 v{dd}, v{SV+4*k+e}, v{SV+4*k+e}")
    I(f"v_mov_b32 v{T+6}, v{T+4}"); I(f"v_mov_b32 v{T+7}, v{T+5}"); I("s_nop 1")
    I(f"v_permlane32_swap_b32 v{T+4}, v{T+6}"); I(f"v_permlane32_swap_b32 v{T+5}, v{T+7}")
    I(f"v_pk_add_f32 {pr(T+4)}, {pr(T+4)}, {pr(T+6)}")
    I("s_mov_b32 s63, 0x42800000"); I("s_mov_b32 s64, 0x3b000000"); I("s_mov_b32 s65, 0x3727c5ac"); I("s_mov_b32 s66, 0xbfb8aa3b"); I("s_mov_b32 s67, 0x3a800000")
    O = T + 8
    for n, (src, dd) in enumerate(((A_, T + 4), (B_, T + 5))):
        o = O + 4 * n
        I(f"v_fmac_f32 v{src+1}, s63, v{dd}")
        I(f"v_mov_b32 v{o+3}, s65"); I(f"v_fmac_f32 v{o+3}, s64, v{src+1}")
        I(f"v_rsq_f32 v{o+1}, v{o+3}"); I(f"v_sqrt_f32 v{o+2}, v{o+3}"); I(f"v_mov_b32 v{o}, v{src}")
        I(f"v_mul_f32 v{o+1}, s66, v{o+1}"); I(f"v_mul_f32 v{o+2}, s67, v{o+2}")
    I(f"v_and_b32 v13, 31, {lane}"); I("v_lshlrev_b32 v13, 5, v13"); I(f"s_add_u32 s63, s{S_M1K}, {LST}"); I("v_add_u32 v13, s63, v13")
    st.lg(f"ds_write_b128 v13, v[{O}:{O+3}]", ("BW", 0)); st.lg(f"ds_write_b128 v13, v[{O+4}:{O+7}] offset:16", ("BW", 0))
    I(f"v_lshlrev_b32 v13, 4, {i}"); I("v_add_u32 v13, s63, v13")
    KQ = SV
    st.wait_lg(("BW", 0))
    for q in range(4): st.lg(f"ds_read_b128 v[{KQ+4*q}:{KQ+4*q+3}], v13 offset:{q*256}", ("BR", q))
    HS = V_WF
    for q in range(4):
        st.wait_lg(("BR", q))
        k = KQ + 4 * q
        I(f"v_sub_f32 v{k}, v{k}, v{V_MU+2*q}")
        tb = T
        for e in range(8):
            y = acc(q, e >> 1) + 2 * (e & 1)
            I(f"v_pk_add_f32 {pr(y)}, {pr(y)}, {pr(k)} op_sel_hi:[1,0]")
            I(f"v_pk_mul_f32 {pr(tb+2*e)}, {pr(y)}, {pr(k)} op_sel:[0,1] op_sel_hi:[1,1]")
        for e in range(16): I(f"v_exp_f32 v{tb+e}, v{tb+e}")
        for e in range(8): I(f"v_pk_fma_f32 {pr(tb+2*e)}, {pr(tb+2*e)}, {pr(k+2)}, {pr(k+2)} op_sel_hi:[1,0,0]")
        for e in range(16): I(f"v_rcp_f32 v{tb+e}, v{tb+e}")
        for e in range(8):
            y = acc(q, e >> 1) + 2 * (e & 1)
            I(f"v_pk_mul_f32 {pr(tb+2*e)}, {pr(tb+2*e)}, {pr(y)}")
        for jp in range(2):
            h = HS + (q * 2 + jp) * 4
            for d in range(4): I(f"v_cvt_pk_f16_f32 v{h+d}, v{tb + jp*8 + 2*d}, v{tb + jp*8 + 2*d + 1}")
            so = ["0", "s48", "s49", "s50"][(q >> 1) * 2 + jp]
            I(f"buffer_store_dwordx4 v[{h}:{h+3}], v{V_ST}, s[{SRD_WS}:{SRD_WS+3}], {so} offen offset:{(q & 1) * 560} {fl}")
            if q == 2:
                t = acc(0, 0) + jp * 4
                h1 = HS + (2 + jp) * 4
                for d in range(4):
                    I(f"v_cndmask_b32 v{t+d}, 0, v{h+d}, s[44:45]"); I(f"v_cndmask_b32 v{t+d}, v{t+d}, v{h1+d}, s[46:47]")
                I(f"buffer_store_dwordx4 v[{t}:{t+3}], v{V_SH}, s[{SRD_WS}:{SRD_WS+3}], {['0', 's48'][jp]} offen {fl}")
    for l in stamp_lines(opt, 6): I(l)
    for l in stamp_store(opt, 0, SRD_WS, S_W, 16): I(l)
    for l in st.resolve(): a(l)
    a.label("L1_end")
    a("s_endpgm")
```

```python
from asmlib import *

WS_H = 0
H_HK = 128 * 1088
H_SIZE = 64 * H_HK
WS_HZ = 10 << 20
WS_U = 18 << 20
USTREAM = 16 * 12288 + 32768
WS_SC = 26 << 20
WS_ST = 27 << 20
SLOT = 24576

S_P = 3
SRD_H = 8; SRD_WS = 12; SRD_XF = 16; SRD_OUT = 20
S_HOFF = 24; S_UOFF = 25; S_CNT = 26; S_HZOFF = 27; S_SIG = 28; S_INV = 29; S_M0B = 30
S_OO = 48
S_R = 32
S_R2 = 80
V_RS = 126
V_U0, V_U1, V_U2 = 1, 2, 3
V_LX0, V_LY0, V_LX1, V_LY1 = 4, 5, 6, 7
V_DMA = 8
V_EW0, V_EW1, V_ER0, V_ER1, V_OUT, V_T = 14, 15, 16, 17, 18, 19
V_EW2, V_EW3 = 124, 125
V_RAW = 20
V_V = 60
V_HZ = 76
V_ACC = 128
F = [0, 4, 12, 24, 36, 48, 60, 72, 84, 92]

def acc(y, j): return V_ACC + (y * 4 + j) * 4

WS_STAMP = 32 << 20
S_ST = 70
def stamp_lines(opt, k, cyc=False):
    if not opt.get("stamp"): return []
    return [f"{'s_memtime' if cyc else 's_memrealtime'} s[100:101]", "s_waitcnt lgkmcnt(0)", f"s_mov_b32 s{S_ST+k}, s100"]
def stamp_store(opt, kern, srdws, sw, vt):
    if not opt.get("stamp"): return []
    l = ["s_waitcnt vmcnt(0)"] + stamp_lines(opt, 7) + stamp_lines(opt, 9, True)
    l += ["s_lshl_b32 s100, s2, 2", f"s_add_u32 s100, s100, s{sw}", "s_lshl_b32 s100, s100, 6", f"s_add_u32 s100, s100, {WS_STAMP + kern * 131072}",
          f"v_mov_b32 v{vt+4}, s100"]
    for b in range(3):
        for k in range(4):
            l.append(f"v_mov_b32 v{vt+k}, s{S_ST + min(b*4+k, 9)}")
        l.append(f"buffer_store_dwordx4 v[{vt}:{vt+3}], v{vt+4}, s[{srdws}:{srdws+3}], 0 offen offset:{b*16}")
        l.append("s_nop 1")
    return l

class Stream:
    def __init__(self):
        self.items = []
    def ins(self, t): self.items.append(("i", t, None))
    def vm(self, t, tag): self.items.append(("vm", t, tag))
    def lg(self, t, tag): self.items.append(("lg", t, tag))
    def wait_vm(self, tag): self.items.append(("wvm", None, tag))
    def wait_lg(self, tag): self.items.append(("wlg", None, tag))
    def mark(self, name): self.items.append(("mark", name, None))
    def resolve(self):
        vm, lg, out = [], [], []
        vdone = ldone = 0
        for k, t, tag in self.items:
            if k == "i": out.append(t)
            elif k == "mark": out.append("@" + t)
            elif k == "vm":
                vm.append(tag); out.append(t); assert len(vm) - vdone <= 63, ("vm overflow", tag)
            elif k == "lg":
                lg.append(tag); out.append(t); assert len(lg) - ldone <= 15, ("lgkm overflow", tag)
            elif k == "wvm":
                idx = max(i for i, x in enumerate(vm) if x == tag)
                n = len(vm) - 1 - idx
                if idx + 1 <= vdone: continue
                vdone = idx + 1
                out.append(f"s_waitcnt vmcnt({n})")
            elif k == "wlg":
                if tag is None: n = 0
                else:
                    idx = max(i for i, x in enumerate(lg) if x == tag)
                    n = len(lg) - 1 - idx
                if len(lg) - n <= ldone: continue
                ldone = len(lg) - n
                out.append(f"s_waitcnt lgkmcnt({n})")
        return out

def hz_reg(f):
    if f < 16: return ("a", 192 + 4 * f)
    if f < 28: return ("v", V_HZ + 4 * (f - 16))
    if f < 44: return ("a", 128 + 4 * (f - 28))
    if f < 60: return ("a", 192 + 4 * (f - 44))
    return ("v", V_HZ + 4 * (f - 60))

def rng(p, b, n=4): return f"{p}[{b}:{b+n-1}]"

def b_load(st, step, k):
    sl = step % 4
    r = sl * 48 + k * 4
    st.vm(f"buffer_load_dwordx4 a[{r}:{r+3}], v{V_U0 + k // 4}, s[{SRD_WS}:{SRD_WS+3}], s{S_UOFF} offen offset:{(k % 4) * 1024}", ("B", step))

def dma_m0(st, step, k):
    st.ins(f"s_add_u32 m0, s{S_M0B}, {(step % 4) * SLOT + k * 4096}")

def dma(st, step, k):
    st.vm(f"buffer_load_dwordx4 v{V_DMA + k}, s[{SRD_H}:{SRD_H+3}], s{S_HOFF} offen lds", ("D", step))

def raw_read(st, step, r, which):
    g = step * 10 + r
    reg = V_RAW + (g % 5) * 8 + which * 4
    sl = step % 4
    va = (V_LX0 if sl < 2 else V_LX1) + which
    off = (sl % 2) * SLOT + r * 1088
    st.lg(f"ds_read_b128 v[{reg}:{reg+3}], v{va} offset:{off}", ("R", g, which))

def vcalc(st, step, r, d, scaled, phase):
    g = step * 10 + r
    x = V_RAW + (g % 5) * 8 + d
    v = V_V + (g % 4) * 4 + d
    if phase == 0:
        st.ins(f"v_pk_fma_f16 v{v}, v{x+4}, s{S_SIG}, v{x}")
    else:
        st.ins(f"v_pk_mul_f16 v{v}, v{v}, s{S_R + (step % 4 if step < 12 else step - 12) + (4 if scaled == 'next' else 0)}")

def hz_load(st, f):
    y, kc = f // 8, f % 8
    p, b = hz_reg(f)
    st.vm(f"buffer_load_dwordx4 {rng(p, b)}, v{V_U0 + kc // 4}, s[{SRD_WS}:{SRD_WS+3}], s{S_HZOFF} offen offset:{(kc % 4) * 1024}", ("Z", f))
    if kc == 7: st.ins(f"s_add_u32 s{S_HZOFF}, s{S_HZOFF}, 0x10000")

def build_main(scaled, opt):
    st = Stream()
    for k in range(12): st.vm("#pro", ("B", 0))
    for s in range(2):
        for k in range(6): st.vm("#pro", ("D", s))
    for k in range(12): st.vm("#pro", ("B", 1))
    st.wait_vm(("D", 0))
    st.ins("s_barrier")
    for l in stamp_lines(opt, 1) + stamp_lines(opt, 5, True): st.ins(l)
    fill = {}
    def at(idx, fn): fill.setdefault(idx, []).append(fn)
    NST = 16
    LR, LV = opt.get("LR", 28), opt.get("LV", 8)
    vpos = opt.get("vpos", [1, 10, 14, 20, 24, 30, 34, 38, 46, 50, 56, 62, 66, 70, 75, 79, 83, 90])
    xpos = [3, 26, 48, 71]
    for s in range(NST):
        base = s * 96
        for r in range(10):
            f0 = base + F[r]
            at(f0 - LR, lambda s=s, r=r: raw_read(st, s, r, 0))
            at(f0 - LR + 1, lambda s=s, r=r: raw_read(st, s, r, 1))
            at(f0 - LV, lambda s=s, r=r: st.wait_lg(("R", s * 10 + r, 1)))
            for d in range(4):
                at(f0 - LV + d, lambda s=s, r=r, d=d: vcalc(st, s, r, d, None, 0))
                if scaled:
                    pos = f0 - LV + d + 1
                    def mul(s=s, r=r, d=d, pos=pos):
                        g = s * 10 + r
                        v = V_V + (g % 4) * 4 + d
                        st.ins(f"v_pk_mul_f16 v{v}, v{v}, v{V_RS + s % 2}")
                    if r == 0 and d == 0:
                        def setr(s=s, pos=pos - 3):
                            it = min((max(pos, 0) // 96) // 4, 3)
                            st.ins(f"v_lshrrev_b32 v{V_RS + s % 2}, v{V_T}, s{S_R + s - 4 * it}")
                            st.ins(f"v_perm_b32 v{V_RS + s % 2}, v{V_RS + s % 2}, v{V_RS + s % 2}, s31")
                        at(pos - 3, setr)
                    at(pos, mul)
        if s < 15:
            at(base + 59, lambda s=s: st.wait_vm(("D", s + 1)))
            at(base + 59, lambda: st.ins("s_barrier"))
            at(base + 95, lambda s=s: st.wait_vm(("B", s + 1)))
        if s <= 13:
            for k in range(6):
                at(base + vpos[k] - 1, lambda s=s, k=k: dma_m0(st, s + 2, k))
                at(base + vpos[k], lambda s=s, k=k: dma(st, s + 2, k))
            at(base + vpos[5] + 1, lambda: st.ins(f"s_add_u32 s{S_HOFF}, s{S_HOFF}, {4 * H_HK}"))
            for k in range(12):
                at(base + vpos[6 + k], lambda s=s, k=k: b_load(st, s + 2, k))
            at(base + vpos[17] + 1, lambda: st.ins(f"s_add_u32 s{S_UOFF}, s{S_UOFF}, 12288"))
            if s >= 12:
                for n in range(4): at(base + xpos[n], lambda f=(s - 12) * 4 + n: hz_load(st, f))
        elif s == 14:
            for k in range(12): at(base + vpos[k], lambda k=k: b_load(st, 16, k))
            at(base + vpos[11] + 1, lambda: st.ins(f"s_add_u32 s{S_UOFF}, s{S_UOFF}, 12288"))
            for k in range(6): at(base + vpos[12 + k], lambda k=k: b_load(st, 17, k))
            for n in range(2): at(base + xpos[n], lambda f=8 + n: hz_load(st, f))
        else:
            for k in range(6, 12): at(base + vpos[k - 6], lambda k=k: b_load(st, 17, k))
            at(base + vpos[5] + 1, lambda: st.ins(f"s_add_u32 s{S_UOFF}, s{S_UOFF}, 12288"))
            for k in range(8): at(base + vpos[6 + k], lambda k=k: b_load(st, 18, k))
            for n in range(4): at(base + vpos[14 + n], lambda f=10 + n: hz_load(st, f))
            for n in range(2): at(base + 92 + 2 * n, lambda f=14 + n: hz_load(st, f))
    def scale(y, e):
        r = acc(y, 0) + e
        st.ins(f"v_mul_f32 v{r}, s{S_INV}, v{r}")
    for e in range(16):
        at(15 * 96 + 40 + e, lambda e=e: scale(0, e))
    Z0 = 16 * 96
    def ex_write(y, j):
        va = [V_EW0, V_EW1, V_EW2, V_EW3][(y // 4) * 2 + (j >> 1)]
        st.lg(f"ds_write_b128 v{va}, v[{acc(y,j)}:{acc(y,j)+3}] offset:{(y % 4) * 16384 + (j & 1) * 1024}", ("W", y))
    for y in range(8):
        zb = Z0 + y * 32
        if y < 7:
            for e in range(16):
                at(zb + 8 + e, lambda y=y, e=e: scale(y + 1, e))
        if y >= 1:
            for j in range(4):
                def wr(y=y - 1, j=j):
                    if j == 0 and y >= 2: st.wait_lg(("W", y - 2))
                    ex_write(y, j)
                at(zb + 8 + 2 * j, wr)
    for n, f in enumerate(range(16, 44)): at(Z0 + 1 + 2 * n, lambda f=f: hz_load(st, f))
    at(Z0 + 20, lambda: st.ins("s_barrier"))
    for n, f in enumerate(range(44, 60)): at(Z0 + 64 + 1 + 2 * n, lambda f=f: hz_load(st, f))
    for n, f in enumerate(range(60, 64)): at(Z0 + 96 + 1 + 2 * n, lambda f=f: hz_load(st, f))
    XF = V_RAW
    def oso(rs, u): return "0" if rs + u == 0 else f"s{S_OO + rs * 2 + u - 1}"
    def xf_load(rs, u, par):
        r = XF + ((rs * 2 + u) * 2 + par) * 4
        st.vm(f"buffer_load_dwordx4 v[{r}:{r+3}], v{V_OUT}, s[{SRD_XF}:{SRD_XF+3}], {oso(rs, u)} offen offset:{par*1024}", ("X", rs))
    n = 0
    for rs in range(2):
        for u in range(2):
            for par in range(2):
                at(Z0 + 96 + 10 + 2 * n, lambda rs=rs, u=u, par=par: xf_load(rs, u, par)); n += 1
    at(Z0 + 128 + 24, lambda: st.wait_lg(("W", 3)))
    at(Z0 + 128 + 24, lambda: st.ins("s_barrier"))
    M = V_ACC
    def mreg(p, j): return M + (p * 4 + j) * 4
    def m_read(rs, p, j):
        va = V_ER0 if rs == 0 else V_ER1
        st.lg(f"ds_read_b128 v[{mreg(p,j)}:{mreg(p,j)+3}], v{va} offset:{p*4096 + j*1024}", ("M", rs, j))
    def final_ops(rs, part):
        ops = []
        T = V_V
        for j in ([part] if part < 4 else []):
            ops.append(lambda j=j: st.wait_lg(("M", rs, j)))
            for hh in range(2):
                m0, m1, m2, m3 = [mreg(p, j) + 2 * hh for p in range(4)]
                ops.append(lambda m0=m0, m1=m1: st.ins(f"v_pk_add_f32 v[{m0}:{m0+1}], v[{m0}:{m0+1}], v[{m1}:{m1+1}]"))
                ops.append(lambda m3=m3, m1=m1: st.ins(f"v_pk_add_f32 v[{m3}:{m3+1}], v[{m1}:{m1+1}], v[{m3}:{m3+1}] neg_lo:[0,1] neg_hi:[0,1]"))
                ops.append(lambda m0=m0, m2=m2: st.ins(f"v_pk_add_f32 v[{m0}:{m0+1}], v[{m0}:{m0+1}], v[{m2}:{m2+1}]"))
                ops.append(lambda m3=m3, m2=m2: st.ins(f"v_pk_add_f32 v[{m3}:{m3+1}], v[{m3}:{m3+1}], v[{m2}:{m2+1}] neg_lo:[0,1] neg_hi:[0,1]"))
        if part < 4: return ops
        ops.append(lambda: st.wait_vm(("X", rs)))
        n = 0
        for u in range(2):
            for par in range(2):
                xr = XF + ((rs * 2 + u) * 2 + par) * 4
                for d in range(4):
                    y0 = mreg(0 if par == 0 else 3, u * 2 + (d >> 1)) + 2 * (d & 1)
                    t = T + (n % 8) * 2; n += 1
                    ops.append(lambda t=t, x=xr + d: st.ins(f"v_lshlrev_b32 v{t}, 16, v{x}"))
                    ops.append(lambda t=t, x=xr + d: st.ins(f"v_and_b32 v{t+1}, 0xffff0000, v{x}"))
                    ops.append(lambda t=t, y0=y0: st.ins(f"v_pk_add_f32 v[{y0}:{y0+1}], v[{y0}:{y0+1}], v[{t}:{t+1}]"))
                    ops.append(lambda d=d, xr=xr, y0=y0: st.ins(f"v_cvt_pk_bf16_f32 v{xr+d}, v{y0}, v{y0+1}"))
                ops.append(lambda xr=xr, u=u, par=par: st.vm(f"buffer_store_dwordx4 v[{xr}:{xr+3}], v{V_OUT}, s[{SRD_OUT}:{SRD_OUT+3}], {oso(rs, u)} offen offset:{par*1024} {opt.get('oflag','')}", ("S", rs)))
        return ops
    rpos = {0: Z0 + 128 + 25, 1: Z0 + 128 + 29, 2: Z0 + 160 + 20, 3: Z0 + 160 + 24}
    cpos = {0: Z0 + 160 + 3, 1: Z0 + 160 + 15, 2: Z0 + 192 + 0, 3: Z0 + 192 + 4}
    for j in range(4):
        for p in range(4):
            at(rpos[j] + p, lambda p=p, j=j: m_read(0, p, j))
        for n, op in enumerate(final_ops(0, j)):
            at(cpos[j] + max(0, n - 1) // 2, op)
    fo = final_ops(0, 4)
    start = Z0 + 192 + 16
    endp = Z0 + 256 - 2
    for n, op in enumerate(fo):
        at(start + (n * (endp - start)) // len(fo), op)
    for idx in sorted(k for k in fill if k < 0):
        for fn in fill[idx]: fn()
    st.ins("s_nop 1")
    gi = 0
    for s in range(NST):
        if s % 4 == 0: st.mark(f"it{s//4}")
        for r in range(10):
            g = s * 10 + r
            v = V_V + (g % 4) * 4
            for dy in range(3):
                y = r - dy
                if y < 0 or y > 7: continue
                for j in range(4):
                    u = (s % 4) * 48 + (dy * 4 + j) * 4
                    if gi % 96 == 0 and s < 3 and False: pass
                    st.ins(f"v_mfma_f32_16x16x32_f16 v[{acc(y,j)}:{acc(y,j)+3}], a[{u}:{u+3}], v[{v}:{v+3}], v[{acc(y,j)}:{acc(y,j)+3}]")
                    for fn in fill.get(gi, []): fn()
                    gi += 1
    st.mark("z2")
    for l in stamp_lines(opt, 2) + stamp_lines(opt, 6, True): st.ins(l)
    for y in range(8):
        for kc in range(8):
            f = y * 8 + kc
            if kc % 4 == 0:
                st.wait_vm(("Z", f + 3))
                if y == 0 and kc == 0: st.wait_vm(("B", 18))
            p, b = hz_reg(f)
            for j in range(4):
                u = (kc * 4 + j) * 4
                st.ins(f"v_mfma_f32_16x16x32_bf16 v[{acc(y,j)}:{acc(y,j)+3}], a[{u}:{u+3}], {rng(p,b)}, v[{acc(y,j)}:{acc(y,j)+3}]")
                for fn in fill.get(gi, []): fn()
                gi += 1
    assert all(k < gi for k in fill)
    for l in stamp_lines(opt, 3): st.ins(l)
    st.ins("s_nop 7")
    for j in range(4): ex_write(7, j)
    st.wait_lg(("W", 7))
    st.ins("s_barrier")
    for j in range(3):
        for p in range(4): m_read(1, p, j)
    for op in final_ops(1, 0): op()
    for p in range(4): m_read(1, p, 3)
    for part in range(1, 5):
        for op in final_ops(1, part): op()
    for l in stamp_lines(opt, 4): st.ins(l)
    for l in stamp_store(opt, 1, SRD_WS, S_P, 60): st.ins(l)
    return st.resolve()

def emit_main(a, lines, scaled, tag, opt={}):
    ab = opt.get("abl2", "")
    def keep(l):
        if "B" in ab and l.startswith("buffer_load_dwordx4 a[") : return False
        if "D" in ab and l.endswith("lds"): return False
        if "M" in ab and "m0" in l: return False
        if "R" in ab and l.startswith("ds_read_b128 v") and int(l.split("[")[1].split(":")[0]) < 60: return False
        if "V" in ab and l.startswith("v_pk_fma_f16"): return False
        if "S" in ab and l.startswith("s_barrier"): return False
        if "W" in ab and l.startswith("s_waitcnt") and "memtime" not in l: return False
        return True
    if ab:
        out = []
        for n, l in enumerate(lines):
            if n and "s_mem" in lines[n - 1]: out.append(l)
            elif keep(l): out.append(l)
        lines = out
    its = {}
    cur = "pre"; its[cur] = []
    for l in lines:
        if l.startswith("@"):
            cur = l[1:]; its[cur] = []
        elif l != "#pro":
            its[cur].append(l)
    assert its["it0"] == its["it1"] == its["it2"], "loop bodies differ"
    for l in its["pre"]: a(l)
    a(f"s_mov_b32 s{S_CNT}, 3")
    a.raw(".p2align 3")
    a.label(f"L2_loop{tag}")
    for l in its["it0"]: a(l)
    if scaled:
        for k in range(6): a(f"s_mov_b64 s[{S_R+2*k}:{S_R+2*k+1}], s[{S_R+4+2*k}:{S_R+5+2*k}]")
    a(f"s_sub_u32 s{S_CNT}, s{S_CNT}, 1")
    a(f"s_cmp_lg_u32 s{S_CNT}, 0")
    a(f"s_cbranch_scc1 L2_loop{tag}")
    for l in its["it3"]: a(l)
    for l in its["z2"]: a(l)
    a("s_endpgm")

def gen_k2(a, name, opt={}):
    kernel_begin(a, name)
    for l in stamp_lines(opt, 0) + stamp_lines(opt, 8, True): a(l)
    a("s_cmp_ge_u32 s2, 256")
    a("s_cbranch_scc1 L2_end")
    a("s_load_dwordx2 s[4:5], s[0:1], 64")
    a("s_load_dwordx2 s[6:7], s[0:1], 0")
    a("s_load_dwordx2 s[66:67], s[0:1], 48")
    a("v_lshrrev_b32 v19, 6, v0")
    a("v_and_b32 v20, 63, v0")
    a(f"v_lshlrev_b32 v{V_U0}, 4, v20")
    a(f"v_readfirstlane_b32 s{S_P}, v19")
    a(f"v_add_u32 v{V_U1}, 4096, v{V_U0}")
    a(f"v_add_u32 v{V_U2}, 8192, v{V_U0}")
    a("s_and_b32 s52, s2, 7"); a("s_lshr_b32 s53, s2, 3")
    a("s_and_b32 s54, s52, 1"); a("s_lshl_b32 s54, s54, 2"); a("s_and_b32 s58, s53, 3"); a("s_add_u32 s54, s54, s58")
    a("s_lshr_b32 s55, s52, 1"); a("s_lshl_b32 s55, s55, 5"); a("s_lshr_b32 s58, s53, 3"); a("s_lshl_b32 s58, s58, 3"); a("s_add_u32 s55, s55, s58")
    a("s_lshr_b32 s56, s53, 2"); a("s_and_b32 s56, s56, 1"); a("s_lshl_b32 s56, s56, 4")
    a("s_and_b32 s57, s55, 63")
    a("s_lshl_b32 s58, s54, 2"); a(f"s_add_u32 s58, s58, s{S_P}"); a(f"s_mul_i32 s{S_UOFF}, s58, {USTREAM}"); a(f"s_add_u32 s{S_UOFF}, s{S_UOFF}, {WS_U}")
    a(f"s_mov_b32 s{S_HOFF}, 0")
    a(f"s_lshl_b32 s{S_M0B}, s{S_P}, 10")
    a("s_waitcnt lgkmcnt(0)")
    srd(a, SRD_WS, 4, 0x10000000)
    def bl(step):
        st = Stream()
        for k in range(12): b_load(st, step, k)
        for l in st.resolve(): a(l)
        a(f"s_add_u32 s{S_UOFF}, s{S_UOFF}, 12288")
    bl(0)
    srd(a, SRD_H, 4, H_SIZE)
    a("s_lshl_b32 s58, s54, 7"); a(f"s_add_u32 s58, s58, {WS_SC}")
    a("s_add_u32 s60, s4, s58"); a("s_addc_u32 s61, s5, 0")
    a(f"s_load_dwordx16 s[{S_R}:{S_R+15}], s[60:61], 0")
    a(f"s_load_dwordx16 s[{S_R2}:{S_R2+15}], s[60:61], 64")
    a("s_sub_u32 s59, s55, 1"); a("s_mul_i32 s59, s59, 1088")
    a(f"s_mul_i32 s62, s56, {2 * H_HK // 16}"); a("s_add_u32 s59, s59, s62")
    a("s_cmp_eq_u32 s57, 0"); a("s_cselect_b32 s63, 68, 0")
    a("s_cmp_eq_u32 s57, 56"); a("s_movk_i32 s64, 680"); a("s_cselect_b32 s64, 612, s64"); a("s_sub_u32 s64, s64, s63")
    a("v_mov_b32 v26, 0x80000000")
    a("v_lshlrev_b32 v21, 4, v0"); a("v_add_u32 v21, s59, v21")
    a("v_subrev_u32 v22, s63, v0")
    for k in range(6):
        d = V_DMA + k
        if k == 2:
            a("v_cmp_gt_u32 vcc, 176, v0")
            a(f"v_mov_b32 v23, {512 - 688}"); a(f"v_mov_b32 v24, {(512 - 688) * 16 + H_HK}")
            a("v_mov_b32 v25, 512"); a("v_cndmask_b32 v23, v23, v25, vcc")
            a("v_mov_b32 v25, 8192"); a("v_cndmask_b32 v24, v24, v25, vcc")
            a("v_add_u32 v23, v22, v23"); a(f"v_add_u32 v{d}, v21, v24")
        else:
            e0 = 256 * k - (688 if k > 2 else 0)
            a(f"v_add_u32 v23, {e0}, v22"); a(f"v_add_u32 v{d}, {e0 * 16 + (H_HK if k > 2 else 0)}, v21")
        a("v_cmp_gt_u32 vcc, s64, v23")
        a("s_nop 1")
        a(f"v_cndmask_b32 v{d}, v26, v{d}, vcc")
    def dl(step):
        st = Stream()
        for k in range(6):
            dma_m0(st, step, k); st.ins("s_nop 0"); dma(st, step, k)
        for l in st.resolve(): a(l)
        a(f"s_add_u32 s{S_HOFF}, s{S_HOFF}, {4 * H_HK}")
    dl(0); dl(1)
    srd(a, SRD_XF, 6, 8 << 20)
    srd(a, SRD_OUT, 66, 8 << 20)
    a("v_lshrrev_b32 v21, 4, v20")
    a("v_and_b32 v22, 15, v20")
    a("v_and_b32 v23, 1, v21"); a("v_mul_u32_u24 v23, 688, v23")
    a("v_lshrrev_b32 v24, 1, v21"); a("v_mul_u32_u24 v24, 17, v24")
    a("v_add3_u32 v23, v23, v24, v22"); a("v_lshlrev_b32 v23, 4, v23")
    a("s_mov_b32 s58, 0"); a(f"s_cmp_eq_u32 s{S_P}, 0"); a(f"s_cselect_b32 s58, {34*16}, s58"); a(f"s_cmp_eq_u32 s{S_P}, 2"); a(f"s_cselect_b32 s58, {35*16}, s58")
    a(f"s_mov_b32 s59, {35*16}"); a(f"s_cmp_eq_u32 s{S_P}, 2"); a("s_cselect_b32 s59, 0, s59"); a(f"s_cmp_eq_u32 s{S_P}, 3"); a("s_cselect_b32 s59, 16, s59")
    a(f"v_add_u32 v{V_LX0}, s58, v23"); a(f"v_add_u32 v{V_LY0}, s59, v23")
    a(f"v_add_u32 v{V_LX1}, {2*SLOT}, v{V_LX0}"); a(f"v_add_u32 v{V_LY1}, {2*SLOT}, v{V_LY0}")
    a(f"s_mov_b32 s{S_SIG}, 0xbc00bc00"); a(f"s_cmp_eq_u32 s{S_P}, 1"); a(f"s_cselect_b32 s{S_SIG}, 0x3c003c00, s{S_SIG}")
    a("v_and_b32 v23, 7, v22"); a("v_xor_b32 v24, v21, v23"); a("v_lshlrev_b32 v24, 4, v24"); a("v_lshl_add_u32 v24, v23, 7, v24")
    a("v_lshrrev_b32 v23, 3, v22"); a("v_lshl_add_u32 v24, v23, 11, v24")
    a(f"s_lshl_b32 s58, s{S_P}, 12"); a(f"v_add_u32 v{V_EW0}, s58, v24"); a(f"v_xor_b32 v{V_EW1}, 64, v{V_EW0}")
    a(f"v_add_u32 v{V_EW2}, 0x10000, v{V_EW0}"); a(f"v_add_u32 v{V_EW3}, 0x10000, v{V_EW1}")
    a(f"s_lshl_b32 s58, s{S_P}, 14"); a(f"v_add_u32 v{V_ER0}, s58, v{V_U0}"); a(f"v_add_u32 v{V_ER1}, 0x10000, v{V_ER0}")
    a(f"s_add_u32 s58, s55, s{S_P}"); a("s_lshl_b32 s58, s58, 16"); a("s_lshl_b32 s59, s56, 11"); a("s_add_u32 s58, s58, s59")
    a("s_lshl_b32 s59, s54, 7"); a("s_add_u32 s58, s58, s59")
    a("v_lshrrev_b32 v23, 3, v20"); a("v_and_b32 v24, 7, v20"); a("v_xor_b32 v24, v24, v23"); a("v_lshlrev_b32 v24, 4, v24")
    a("v_lshl_add_u32 v24, v23, 11, v24"); a(f"v_add_u32 v{V_OUT}, s58, v24")
    a(f"s_mov_b32 s{S_OO}, 0x4000"); a(f"s_mov_b32 s{S_OO+1}, 0x40000"); a(f"s_mov_b32 s{S_OO+2}, 0x44000")
    a(f"s_add_u32 s58, s{S_P}, 1"); a(f"s_cmp_eq_u32 s{S_P}, 0"); a("s_cselect_b32 s58, 0, s58"); a(f"s_cmp_eq_u32 s{S_P}, 3"); a("s_cselect_b32 s58, 1, s58")
    a("s_lshl_b32 s58, s58, 14"); a("s_lshl_b32 s59, s56, 9"); a("s_add_u32 s58, s58, s59"); a("s_lshl_b32 s59, s55, 16"); a("s_add_u32 s58, s58, s59")
    a(f"s_add_u32 s{S_HZOFF}, s58, {WS_HZ}")
    for i in range(128): a(f"v_mov_b32 v{V_ACC+i}, 0")
    bl(1)
    a("s_waitcnt lgkmcnt(0)")
    a(f"s_mov_b32 s58, s{S_R}"); a(f"s_mov_b32 s59, s{S_R}")
    E = [S_R + k for k in range(16)] + [S_R2 + k for k in range(16)]
    for r in E[1:]:
        a(f"s_min_i32 s58, s58, s{r}"); a(f"s_max_i32 s59, s59, s{r}")
    a("s_sub_i32 s60, 117, s58"); a("s_max_i32 s60, s60, 1"); a("s_min_i32 s60, s60, 254"); a(f"s_lshl_b32 s{S_INV}, s60, 23")
    a("s_cmp_lg_u32 s58, s59")
    a("s_cbranch_scc1 L2_slow")
    emit_main(a, build_main(False, opt), False, "f", opt)
    a.label("L2_slow")
    for n, r in enumerate(E):
        a(f"s_sub_i32 s60, s{r}, s58")
        a("s_sub_i32 s61, 15, s60"); a("s_lshl_b32 s61, s61, 10")
        a("s_sub_i32 s62, 24, s60"); a("s_lshl_b32 s62, 1, s62")
        a("s_cmp_lt_i32 s60, 15"); a("s_cselect_b32 s61, s61, s62")
        a("s_cmp_gt_i32 s60, 24"); a("s_cselect_b32 s61, 0, s61")
        if n % 2 == 0: a("s_mov_b32 s63, s61")
        else: a(f"s_pack_ll_b32_b16 s{S_R + n // 2}, s63, s61")
    a("v_and_b32 v21, 32, v20"); a("v_lshrrev_b32 v21, 1, v21")
    a(f"v_mov_b32 v{V_T}, v21")
    a("s_mov_b32 s31, 0x01000100")
    emit_main(a, build_main(True, opt), True, "s")
    a.label("L2_end")
    a("s_endpgm")
```

```python
import sys
from asmlib import *
import k1c, k2gen
def gen(path, opt={}):
    a = Asm()
    L = {"1": f"; @launch kernel=cn_prep_kernel grid=(256,1,1) block=(256,1,1) lds={k1c.LDS_BYTES}", "2": "; @launch kernel=cn_conv_kernel grid=(256,1,1) block=(256,1,1) lds=131072"}
    a.raw(HEADER + "\n".join(L[c] for c in opt.get("list", "12")))
    a.raw('.amdgcn_target "amdgcn-amd-amdhsa--gfx950"')
    k1c.gen_k1(a, "cn_prep_kernel", opt)
    k2gen.gen_k2(a, "cn_conv_kernel", opt)
    kernel_desc(a, "cn_prep_kernel", 256 + 72, 256)
    kernel_desc(a, "cn_conv_kernel", 512, 256)
    open(path, "w").write(a.text())
if __name__ == "__main__":
    import json
    opt = json.loads(sys.argv[2]) if len(sys.argv) > 2 else {}
    gen(sys.argv[1] if len(sys.argv) > 1 else "standalone__controlnet__diffusion.s", opt)
```

```python
from asmlib import *
from k2gen import Stream, H_HK, WS_H, WS_HZ, WS_U, USTREAM, WS_SC, WS_ST, stamp_lines, stamp_store

S_W = 3
SRD_C = 8; SRD_W = 12; SRD_X = 16; SRD_WS = 20; SRD_A = 24; SRD_B = 28; SRD_D = 32
S_WOFF, S_COFF, S_AOFF, S_BOFF, S_TMP, S_M4K, S_M1K = 36, 37, 38, 39, 40, 41, 42
S_XCD, S_JJ, S_R, S_NQ, S_CB, S_CP, S_NB = 54, 55, 56, 57, 58, 59, 60
LZ, LMX, LST = 131072, 135168, 135296
LDS_BYTES = LST + 4096

V_WD, V_CD0, V_CD1, V_AD, V_AD4, V_BD, V_XD0, V_XD1 = 1, 2, 3, 4, 5, 6, 7, 8
V_LANE, V_G, V_I = 10, 11, 12
V_T = 16
V_CF = 20
V_AF = 24
V_BT = 28
V_ST, V_SH, V_SZ, V_XR = 30, 31, 9, 0
V_WF = 32
V_TMP = 64
V_ACC = 128
V_ACW = 192
V_MU = 240
pr = lambda r: f"v[{r}:{r+1}]"

def gen_k1(a, name, opt={}):
    from k2gen import stamp_lines as sl0
    pst = opt.get("pst")
    def stamp_lines(opt, k, cyc=False, pro=False):
        if pst and k in (2, 3, 4, 5) and not pro: return []
        if pro and not pst: return []
        return sl0(opt, k, cyc)
    def acc(q, j): return V_ACC + (q * 4 + j) * 4
    def acw(t): return V_ACW + t * 4
    kernel_begin(a, name)
    for l in stamp_lines(opt, 0) + stamp_lines(opt, 8, True): a(l)
    a("s_cmp_ge_u32 s2, 256")
    a("s_cbranch_scc1 L1_end")
    a("s_load_dwordx4 s[4:7], s[0:1], 16")
    a("s_load_dwordx4 s[64:67], s[0:1], 32")
    a("s_load_dwordx2 s[68:69], s[0:1], 8")
    a("s_load_dwordx4 s[96:99], s[0:1], 56")
    a("v_lshrrev_b32 v13, 6, v0")
    a(f"v_and_b32 v{V_LANE}, 63, v0")
    a(f"v_lshrrev_b32 v{V_G}, 4, v{V_LANE}")
    a(f"v_readfirstlane_b32 s{S_W}, v13")
    a(f"v_and_b32 v{V_I}, 15, v{V_LANE}")
    a(f"s_and_b32 s{S_XCD}, s2, 7"); a(f"s_lshr_b32 s{S_JJ}, s2, 3")
    a(f"s_lshr_b32 s61, s{S_JJ}, 2")
    a(f"s_lshl_b32 s62, s{S_XCD}, 3"); a("s_add_u32 s62, s62, s61")
    a(f"s_and_b32 s{S_NQ}, s{S_JJ}, 3")
    a(f"s_lshr_b32 s63, s{S_W}, 1"); a(f"s_lshl_b32 s{S_R}, s62, 1"); a(f"s_add_u32 s{S_R}, s{S_R}, s63")
    if opt.get("rotm", 1):
        a(f"s_lshl_b32 s63, s{S_NQ}, 1"); a("s_add_u32 s61, s61, s63"); a("s_and_b32 s61, s61, 7")
    a(f"s_lshl_b32 s{S_WOFF}, s61, 16"); a(f"s_lshl_b32 s{S_COFF}, s61, 7")
    a(f"s_lshl_b32 s{S_M4K}, s{S_W}, 12"); a(f"s_lshl_b32 s{S_M1K}, s{S_W}, 10")
    a(f"v_and_b32 v13, 2, v{V_G}"); a("v_lshlrev_b32 v13, 2, v13"); a(f"v_and_b32 v14, 1, v{V_G}"); a("v_or_b32 v13, v13, v14")
    a(f"v_xor_b32 v13, v13, v{V_I}"); a("v_lshlrev_b32 v13, 4, v13"); a(f"v_lshl_add_u32 v13, v{V_G}, 10, v13")
    a(f"s_lshl_b32 s63, s{S_NQ}, 8"); a(f"s_lshl_b32 s43, s{S_W}, 14"); a("s_add_u32 s63, s63, s43")
    a(f"v_add_u32 v{V_WD}, s63, v13")
    a(f"v_lshrrev_b32 v14, 3, v{V_LANE}"); a(f"v_and_b32 v15, 7, v{V_LANE}"); a("v_xor_b32 v13, v15, v14"); a("v_lshlrev_b32 v13, 4, v13")
    a("v_lshl_add_u32 v64, v14, 11, v13")
    a("v_lshl_add_u32 v65, v14, 10, v13")
    a(f"s_lshl_b32 s63, s{S_R}, 16"); a(f"s_and_b32 s43, s{S_W}, 1"); a("s_lshl_b32 s43, s43, 15"); a("s_add_u32 s43, s43, s63")
    a(f"v_add_u32 v{V_CD0}, s43, v64"); a(f"v_add_u32 v{V_CD1}, 0x4000, v{V_CD0}")
    a("s_waitcnt lgkmcnt(0)")
    for l in stamp_lines(opt, 2, pro=True): a(l)
    srd(a, SRD_W, 6, 512 * 1024)
    srd(a, SRD_C, 4, 8 << 20)
    st = Stream()
    I = st.ins
    def slot(K): return (K % 4) * 32768
    def d_gemm(P):
        l = []
        for m in range(4):
            def w(m=m):
                I(f"s_add_u32 m0, s{S_M4K}, {slot(P) + m * 1024}"); I(f"s_add_u32 s{S_TMP}, s{S_WOFF}, {m * 4096}")
                st.vm(f"buffer_load_dwordx4 v{V_WD}, s[{SRD_W}:{SRD_W+3}], s{S_TMP} offen {opt.get('fw','')} lds", ("D", P))
                if m == 3: I(f"s_add_u32 s{S_WOFF}, s{S_WOFF}, 0x10000"); I(f"s_and_b32 s{S_WOFF}, s{S_WOFF}, 0x7ffff")
            def c(m=m):
                par, ph = m >> 1, m & 1
                I(f"s_add_u32 m0, s{S_M4K}, {slot(P) + 16384 + par * 2048 + ph * 1024}"); I(f"s_add_u32 s{S_TMP}, s{S_COFF}, {par * 1024}")
                st.vm(f"buffer_load_dwordx4 v{V_CD0 + ph}, s[{SRD_C}:{SRD_C+3}], s{S_TMP} offen {opt.get('fc','')} lds", ("D", P))
                if m == 3: I(f"s_add_u32 s{S_COFF}, s{S_COFF}, 128"); I(f"s_and_b32 s{S_COFF}, s{S_COFF}, 0x3ff")
            l += [c, w]
        return l
    def d_x():
        l = []
        for n in range(8):
            def x(n=n):
                q, ph = n >> 1, n & 1
                I(f"s_add_u32 m0, s43, {n * 1024}"); I(f"s_mov_b32 s{S_TMP}, {(q >> 1) * 32768 + (q & 1) * 1024}")
                st.vm(f"buffer_load_dwordx4 v{V_XD0 + ph}, s[{SRD_X}:{SRD_X+3}], s{S_TMP} offen {opt.get('fx','')} lds", ("D", 8))
            l.append(x)
        def z():
            I(f"s_add_u32 m0, s{S_M1K}, {LZ}"); I(f"s_lshl_b32 s{S_TMP}, s{S_CB}, 15")
            st.vm(f"buffer_load_dwordx4 v{V_BD}, s[{SRD_B}:{SRD_B+3}], s{S_TMP} offen lds", ("D", 8))
        return l + [z]
    def d_wt(K):
        l = []
        for m in range(5):
            def A(m=m):
                I(f"s_add_u32 m0, s{S_M1K}, {slot(K) + m * 4096}"); I(f"s_add_u32 s{S_TMP}, s{S_AOFF}, {m * 1048576}")
                st.vm(f"buffer_load_dwordx4 v{V_AD if m < 4 else V_AD4}, s[{SRD_A}:{SRD_A+3}], s{S_TMP} offen {opt.get('fa','')} lds", ("D", K))
                if m == 4: I(f"s_add_u32 s{S_AOFF}, s{S_AOFF}, 128"); I(f"s_and_b32 s{S_AOFF}, s{S_AOFF}, 0x3ff")
            l.append(A)
        for m in range(2):
            def B(m=m):
                I(f"s_add_u32 m0, s{S_M1K}, {slot(K) + 20480 + m * 4096}"); I(f"s_add_u32 s{S_TMP}, s{S_BOFF}, {m * 32768}")
                st.vm(f"buffer_load_dwordx4 v{V_BD}, s[{SRD_B}:{SRD_B+3}], s{S_TMP} offen lds", ("D", K))
                if m == 1: I(f"s_add_u32 s{S_BOFF}, s{S_BOFF}, 0x10000"); I(f"s_and_b32 s{S_BOFF}, s{S_BOFF}, 0x7ffff")
            l.append(B)
        return l
    def dlist(K): return d_gemm(K) if K < 8 else (d_x() if K == 8 else (d_wt(K) if K <= 16 else []))
    for fn in dlist(0): fn()
    for l in stamp_lines(opt, 3, pro=True): I(l)
    b = Asm(); srd(b, SRD_X, 68, 8 << 20); srd(b, SRD_A, 66, 9 * 512 * 1024); srd(b, SRD_B, 64, 512 * 1024); srd(b, SRD_WS, 98, 0x10000000); srd(b, SRD_D, 96, 256)
    for l in b.lines: I(l.strip())
    I(f"s_lshr_b32 s{S_CB}, s{S_JJ}, 4"); I(f"s_lshl_b32 s63, s{S_XCD}, 1"); I(f"s_add_u32 s{S_CB}, s{S_CB}, s63")
    I(f"s_lshr_b32 s{S_CP}, s{S_JJ}, 3"); I(f"s_and_b32 s{S_CP}, s{S_CP}, 1"); I(f"s_and_b32 s{S_NB}, s{S_JJ}, 7")
    tch = opt.get("touch", "")
    if tch:
        I(f"v_lshrrev_b32 v66, 1, v{V_LANE}"); I(f"v_and_b32 v67, 1, v{V_LANE}"); I("v_lshlrev_b32 v67, 7, v67"); I("v_lshl_add_u32 v66, v66, 10, v67")
        I("s_lshl_b32 s63, s62, 17"); I(f"s_lshl_b32 s{S_TMP}, s{S_W}, 15"); I(f"s_add_u32 s63, s63, s{S_TMP}"); I(f"s_lshl_b32 s{S_TMP}, s{S_NQ}, 8"); I(f"s_add_u32 s63, s63, s{S_TMP}")
        if "c" in tch: st.vm(f"buffer_load_dword v68, v66, s[{SRD_C}:{SRD_C+3}], s63 offen {opt.get('ft','')}", ("T", 0))
    I("s_mov_b32 s67, s63")
    def xtouch(): st.vm(f"buffer_load_dword v69, v66, s[{SRD_X}:{SRD_X+3}], s67 offen {opt.get('ft','')}", ("T", 1))
    for l in stamp_lines(opt, 4, pro=True): I(l)
    g, i, lane = f"v{V_G}", f"v{V_I}", f"v{V_LANE}"
    I(f"v_lshrrev_b32 v13, 2, {i}"); I("v_and_b32 v14, 2, v13"); I("v_lshlrev_b32 v14, 2, v14"); I("v_and_b32 v15, 1, v13"); I("v_or_b32 v14, v14, v15")
    I(f"v_and_b32 v15, 3, {i}"); I("v_lshlrev_b32 v15, 1, v15"); I(f"s_and_b32 s63, s{S_W}, 1"); I("s_lshl_b32 s63, s63, 3"); I("v_or_b32 v15, s63, v15")
    I("v_xor_b32 v14, v14, v15"); I("v_lshlrev_b32 v14, 4, v14"); I(f"v_lshl_add_u32 v15, {g}, 3, v13"); I(f"v_lshl_add_u32 v{V_T}, v15, 8, v14")
    I(f"v_xor_b32 v{V_T+1}, 16, v{V_T}"); I(f"v_add_u32 v{V_T+2}, 0x10000, v{V_T}"); I(f"v_add_u32 v{V_T+3}, 0x10000, v{V_T+1}")
    I("v_lshrrev_b32 v13, 1, v13"); I(f"s_lshr_b32 s63, s{S_W}, 1"); I("v_xor_b32 v13, s63, v13"); I("v_lshlrev_b32 v13, 6, v13")
    I(f"v_and_b32 v14, 3, {i}"); I("v_lshl_add_u32 v13, v14, 4, v13"); I("v_lshl_add_u32 v13, v15, 7, v13")
    I(f"s_and_b32 s63, s{S_W}, 1"); I("s_lshl_b32 s63, s63, 3"); I("s_add_u32 s63, s63, 20480"); I(f"v_add_u32 v{V_BT}, s63, v13"); I(f"v_add_u32 v{V_BT+1}, 0x10000, v{V_BT}")
    I(f"v_and_b32 v13, 7, {i}"); I(f"v_xor_b32 v14, {g}, v13"); I("v_lshlrev_b32 v14, 4, v14"); I(f"v_lshl_add_u32 v{V_AF}, {i}, 7, v14")
    I(f"v_xor_b32 v{V_AF+1}, 64, v{V_AF}"); I(f"v_add_u32 v{V_AF+2}, 0x10000, v{V_AF}"); I(f"v_add_u32 v{V_AF+3}, 0x10000, v{V_AF+1}")
    I(f"s_lshr_b32 s63, s{S_W}, 1"); I("s_lshl_b32 s63, s63, 13"); I("s_add_u32 s63, s63, 16384")
    for k in range(4): I(f"v_add_u32 v{V_CF+k}, s63, v{V_AF+k}")
    I(f"v_lshlrev_b32 v14, 1, {g}"); I("v_xor_b32 v14, v14, v13"); I("v_lshlrev_b32 v14, 4, v14"); I(f"v_lshl_add_u32 v14, {i}, 7, v14")
    I(f"s_lshl_b32 s43, s{S_W}, 13"); I(f"v_add_u32 v{V_XR}, s43, v14")
    I(f"s_lshl_b32 s63, s{S_R}, 16"); I(f"s_lshl_b32 s{S_TMP}, s{S_NQ}, 8"); I(f"s_add_u32 s63, s63, s{S_TMP}")
    I(f"s_and_b32 s{S_TMP}, s{S_W}, 1"); I(f"s_lshl_b32 s{S_TMP}, s{S_TMP}, 7"); I(f"s_add_u32 s63, s63, s{S_TMP}")
    I(f"v_add_u32 v{V_XD0}, s63, v64"); I(f"v_add_u32 v{V_XD1}, 0x4000, v{V_XD0}")
    I(f"s_lshr_b32 s63, s{S_W}, 1"); I("s_lshl_b32 s63, s63, 19"); I(f"s_lshl_b32 s{S_TMP}, s{S_CB}, 15"); I(f"s_add_u32 s63, s63, s{S_TMP}")
    I(f"s_lshl_b32 s{S_TMP}, s{S_CP}, 14"); I(f"s_add_u32 s63, s63, s{S_TMP}"); I(f"s_and_b32 s{S_TMP}, s{S_W}, 1"); I(f"s_lshl_b32 s{S_TMP}, s{S_TMP}, 13"); I(f"s_add_u32 s63, s63, s{S_TMP}")
    I(f"v_add_u32 v{V_AD}, s63, v65")
    I(f"s_cmp_lt_u32 s{S_W}, 2"); I("s_cselect_b32 s63, 0, 0x80000000"); I(f"v_or_b32 v{V_AD4}, s63, v{V_AD}")
    I(f"s_lshl_b32 s{S_AOFF}, s{S_NB}, 7"); I(f"s_lshl_b32 s{S_BOFF}, s{S_NB}, 16")
    I(f"v_lshrrev_b32 v13, 3, {lane}"); I("v_lshrrev_b32 v14, 1, v13"); I("v_and_b32 v14, 1, v14"); I("v_lshlrev_b32 v14, 2, v14")
    I(f"v_and_b32 v15, 7, {lane}"); I("v_xor_b32 v14, v14, v15"); I("v_lshlrev_b32 v14, 4, v14"); I("v_lshl_add_u32 v14, v13, 10, v14")
    I(f"s_lshl_b32 s63, s{S_W}, 13"); I(f"s_lshl_b32 s{S_TMP}, s{S_NB}, 7"); I(f"s_add_u32 s63, s63, s{S_TMP}"); I(f"v_add_u32 v{V_BD}, s63, v14")
    I(f"s_lshl_b32 s63, s{S_NQ}, 1"); I(f"s_and_b32 s{S_TMP}, s{S_W}, 1"); I(f"s_add_u32 s63, s63, s{S_TMP}"); I(f"s_mul_i32 s63, s63, {8 * H_HK}")
    I(f"s_mul_i32 s{S_TMP}, s{S_R}, 1088"); I(f"s_add_u32 s63, s63, s{S_TMP}")
    I(f"v_lshrrev_b32 v13, 1, {g}"); I(f"s_mov_b32 s{S_TMP}, {4 * H_HK}"); I(f"v_mul_lo_u32 v13, s{S_TMP}, v13")
    I(f"v_and_b32 v14, 1, {g}"); I("v_mul_u32_u24 v14, 272, v14"); I("v_add3_u32 v13, v13, v14, s63")
    I(f"v_lshl_add_u32 v{V_ST}, {i}, 4, v13")
    I("v_mov_b32 v14, 0x80000000")
    for iv, off in ((0, 256), (15, 2 * H_HK + 544), (1, 544), (14, 2 * H_HK + 256)):
        I(f"v_cmp_eq_u32 vcc, {iv}, {i}"); I(f"v_add_u32 v15, {off}, v13"); I("s_nop 0")
        I("v_cndmask_b32 v14, v14, v15, vcc")
        if iv == 0: I("s_mov_b64 s[44:45], vcc")
        if iv == 15: I("s_mov_b64 s[46:47], vcc")
    I(f"v_mov_b32 v{V_SH}, v14")
    I(f"s_lshl_b32 s63, s{S_R}, 16"); I(f"s_lshr_b32 s{S_TMP}, s{S_NQ}, 1"); I(f"s_lshl_b32 s{S_TMP}, s{S_TMP}, 15"); I(f"s_add_u32 s63, s63, s{S_TMP}")
    I(f"s_and_b32 s{S_TMP}, s{S_NQ}, 1"); I(f"s_lshl_b32 s{S_TMP}, s{S_TMP}, 12"); I(f"s_add_u32 s63, s63, s{S_TMP}")
    I(f"s_and_b32 s{S_TMP}, s{S_W}, 1"); I(f"s_lshl_b32 s{S_TMP}, s{S_TMP}, 11"); I(f"s_add_u32 s63, s63, s{S_TMP}"); I(f"s_add_u32 s63, s63, {WS_HZ}")
    I(f"v_lshlrev_b32 v13, 9, {g}"); I(f"v_lshl_add_u32 v13, {i}, 4, v13"); I(f"v_add_u32 v{V_SZ}, s63, v13")
    I(f"s_mov_b32 s48, {H_HK}"); I(f"s_mov_b32 s49, {2 * H_HK}"); I(f"s_mov_b32 s50, {3 * H_HK}")
    I("s_mov_b32 s51, 0x4000"); I("s_mov_b32 s52, 0x2000"); I("s_mov_b32 s53, 0x6000")
    for k in range(64): I(f"v_mov_b32 v{V_ACC+k}, 0")
    for k in range(36): I(f"v_mov_b32 v{V_ACW+k}, 0")
    for fn in dlist(1): fn()

    def wread(s, j, hh):
        K = s >> 1
        r = V_WF + (s % 2) * 16 + j * 4 + hh * 2
        st.lg(f"ds_read_b64_tr_b16 v[{r}:{r+1}], v{V_T + ((K % 4) >> 1) * 2 + (j >> 1)} offset:{(K % 2) * 32768 + (s & 1) * 8192 + hh * 1024 + (j & 1) * 8}", ("F", s))
    def cread(s, q):
        K = s >> 1
        r = (s % 2) * 16 + q * 4
        st.lg(f"ds_read_b128 a[{r}:{r+3}], v{V_CF + ((K % 4) >> 1) * 2 + (s & 1)} offset:{(K % 2) * 32768 + q * 2048}", ("F", s))
    def aread(s, t):
        K = 9 + (s >> 1)
        r = (s % 2) * 36 + t * 4
        st.lg(f"ds_read_b128 a[{r}:{r+3}], v{V_AF + ((K % 4) >> 1) * 2 + (s & 1)} offset:{(K % 2) * 32768 + t * 2048}", ("G", s))
    def bread(s, hh):
        K = 9 + (s >> 1)
        r = V_WF + (s % 2) * 4 + hh * 2
        st.lg(f"ds_read_b64_tr_b16 v[{r}:{r+1}], v{V_BT + ((K % 4) >> 1)} offset:{(K % 2) * 32768 + (s & 1) * 4096 + hh * 512}", ("G", s))
    for l in stamp_lines(opt, 5, pro=True): I(l)
    st.wait_vm(("D", 0))
    I("s_barrier")
    for l in stamp_lines(opt, 1): I(l)
    for j in range(4): wread(0, j, 0); wread(0, j, 1)
    for q in range(4): cread(0, q)
    fill = {}
    def at(idx, fn): fill.setdefault(idx, []).append(fn)
    def spread(fns, lo, hi):
        for n, fn in enumerate(fns): at(lo + (n * (hi - lo)) // max(1, len(fns)), fn)
    spread(dlist(2), 0, 8)
    spread(dlist(3), 8, 16)
    if "x" in tch: at(opt.get("xtpos", 40), xtouch)
    for s in range(16):
        base = s * 16
        if s & 1:
            K = (s + 1) >> 1
            if K < 8: at(base, lambda K=K: st.wait_vm(("D", K)))
            at(base, lambda: I("s_barrier"))
            spread(dlist(K + 3), base + 1, base + (30 if s < 15 else 15))
        if s + 1 < 16:
            for e in range(8): at(base + 1 + e, lambda s=s, e=e: wread(s + 1, e >> 1, e & 1))
            for q in range(4): at(base + 9 + q, lambda s=s, q=q: cread(s + 1, q))
    XV = V_TMP
    I_x = lambda q, jp: st.lg(f"ds_read_b128 v[{XV+(q*2+jp)*4}:{XV+(q*2+jp)*4+3}], v{V_XR if jp == 0 else 13} offset:{q * 2048}", ("XR", q))
    at(15 * 16 + 1, lambda: I(f"v_xor_b32 v13, 16, v{V_XR}"))
    at(15 * 16 + 2, lambda: st.wait_vm(("D", 8)))
    for n in range(8): at(15 * 16 + 3 + n, lambda n=n: I_x(n >> 1, n & 1))
    gi = 0
    for s in range(16):
        st.wait_lg(("F", s))
        for j in range(4):
            for q in range(4):
                wr = V_WF + (s % 2) * 16 + j * 4; c = (s % 2) * 16 + q * 4
                I(f"v_mfma_f32_16x16x32_bf16 v[{acc(q,j)}:{acc(q,j)+3}], v[{wr}:{wr+3}], a[{c}:{c+3}], v[{acc(q,j)}:{acc(q,j)+3}]")
                for fn in fill.get(gi, []): fn()
                gi += 1
    I("s_nop 7")
    for l in stamp_lines(opt, 2): I(l)
    T = V_TMP + 32
    SUM = V_WF
    for q in range(4):
        st.wait_lg(("XR", q))
        for jp in range(2):
            for d in range(4):
                x = XV + (q * 2 + jp) * 4 + d
                y = acc(q, 2 * jp + (d >> 1)) + 2 * (d & 1)
                t = T + ((jp * 4 + d) % 8) * 2
                I(f"v_lshlrev_b32 v{t}, 16, v{x}"); I(f"v_and_b32 v{t+1}, 0xffff0000, v{x}")
                I(f"v_pk_add_f32 {pr(y)}, {pr(y)}, {pr(t)}")
        s0 = SUM + q * 4
        I(f"v_pk_add_f32 {pr(s0)}, {pr(acc(q,0))}, {pr(acc(q,0)+2)}"); I(f"v_pk_add_f32 {pr(s0+2)}, {pr(acc(q,1))}, {pr(acc(q,1)+2)}")
        for j in (2, 3):
            for rp in range(2): I(f"v_pk_add_f32 {pr(s0+2*rp)}, {pr(s0+2*rp)}, {pr(acc(q,j)+2*rp)}")
        I(f"v_pk_add_f32 {pr(s0)}, {pr(s0)}, {pr(s0+2)}"); I(f"v_add_f32 v{s0}, v{s0}, v{s0+1}")
    for q in range(4): I(f"v_mov_b32 v{SUM+q*4+1}, v{SUM+q*4}")
    I("s_nop 0")
    for q in range(4): I(f"v_permlane32_swap_b32 v{SUM+q*4}, v{SUM+q*4+1}")
    for q in range(4): I(f"v_add_f32 v{SUM+q*4}, v{SUM+q*4}, v{SUM+q*4+1}")
    for q in range(4): I(f"v_mov_b32 v{SUM+q*4+1}, v{SUM+q*4}")
    I("s_nop 0")
    for q in range(4): I(f"v_permlane16_swap_b32 v{SUM+q*4}, v{SUM+q*4+1}")
    I("s_mov_b32 s63, 0xbc800000")
    for q in range(4): I(f"v_add_f32 v{SUM+q*4}, v{SUM+q*4}, v{SUM+q*4+1}")
    for q in range(4): I(f"v_mul_f32 v{V_MU+2*q}, s63, v{SUM+q*4}")
    HS = XV
    sq = ["0", "s51", "s52", "s53"]
    fl = opt.get("stflag", "")
    def hz_store(q, jp):
        h = HS + (q * 2 + jp) * 4
        st.vm(f"buffer_store_dwordx4 v[{h}:{h+3}], v{V_SZ}, s[{SRD_WS}:{SRD_WS+3}], {sq[q]} offen offset:{jp*256} {opt.get('hzflag','')}", ("HZ", 0))
    I(f"s_cmp_ge_u32 s{S_NQ}, 2")
    I("s_cbranch_scc1 L1_hz_sd")
    n0 = len(st.items)
    for q in range(4):
        ng = "-" if q & 1 else ""
        for jp in range(2):
            h = HS + (q * 2 + jp) * 4
            for d in range(4):
                y = acc(q, 2 * jp + (d >> 1)) + 2 * (d & 1)
                I(f"v_cvt_pk_bf16_f32 v{h+d}, {ng}v{y}, {ng}v{y+1}")
            hz_store(q, jp)
    st.items[n0:] = [("i", t, None) if k == "vm" else (k, t, tg) for k, t, tg in st.items[n0:]]
    I("s_branch L1_hz_done")
    I("L1_hz_sd:")
    for qq in range(2):
        e, o = 2 * qq, 2 * qq + 1
        for jp in range(2):
            for d in range(4):
                ye = acc(e, 2 * jp + (d >> 1)) + 2 * (d & 1); yo = acc(o, 2 * jp + (d >> 1)) + 2 * (d & 1)
                ts = T + d * 4
                I(f"v_pk_mul_f32 {pr(ts)}, {pr(ye)}, 0.5 op_sel_hi:[1,0]")
                I(f"v_pk_fma_f32 {pr(ts+2)}, {pr(yo)}, -0.5, {pr(ts)} op_sel_hi:[1,0,1]")
                I(f"v_pk_fma_f32 {pr(ts)}, {pr(yo)}, 0.5, {pr(ts)} op_sel_hi:[1,0,1]")
            for sel in range(2):
                h = HS + ((2 * qq + sel) * 2 + jp) * 4
                for d in range(4): I(f"v_cvt_pk_bf16_f32 v{h+d}, v{T + d*4 + sel*2}, v{T + d*4 + sel*2 + 1}")
                hz_store(2 * qq + sel, jp)
    I("L1_hz_done:")
    for q in range(4):
        s0 = SUM + q * 4
        for j in range(4):
            for rp in range(2):
                y = acc(q, j) + 2 * rp
                I(f"v_pk_add_f32 {pr(y)}, {pr(y)}, {pr(V_MU+2*q)} op_sel_hi:[1,0]")
                if j == 0: I(f"v_pk_mul_f32 {pr(s0+2*rp)}, {pr(y)}, {pr(y)}")
                else: I(f"v_pk_fma_f32 {pr(s0+2*rp)}, {pr(y)}, {pr(y)}, {pr(s0+2*rp)}")
        I(f"v_pk_add_f32 {pr(s0)}, {pr(s0)}, {pr(s0+2)}"); I(f"v_add_f32 v{s0}, v{s0}, v{s0+1}")
    s_ = [SUM + q * 4 for q in range(4)]
    I(f"v_cmp_eq_u32 vcc, 1, {g}"); I(f"v_mov_b32 v{T}, v{V_MU}")
    I(f"v_permlane32_swap_b32 v{s_[0]}, v{s_[1]}"); I(f"v_cndmask_b32 v{T}, v{T}, v{V_MU+4}, vcc"); I(f"v_cmp_eq_u32 vcc, 2, {g}")
    I(f"v_permlane32_swap_b32 v{s_[2]}, v{s_[3]}")
    I(f"v_add_f32 v{s_[0]}, v{s_[0]}, v{s_[1]}"); I(f"v_add_f32 v{s_[2]}, v{s_[2]}, v{s_[3]}")
    I(f"v_cndmask_b32 v{T}, v{T}, v{V_MU+2}, vcc"); I(f"v_cmp_eq_u32 vcc, 3, {g}")
    I(f"v_permlane16_swap_b32 v{s_[0]}, v{s_[2]}")
    I(f"v_add_f32 v{T+1}, v{s_[0]}, v{s_[2]}")
    I(f"v_cndmask_b32 v{T}, v{T}, v{V_MU+6}, vcc")
    I(f"v_lshrrev_b32 v13, 1, {g}"); I(f"v_and_b32 v14, 1, {g}"); I("v_lshl_add_u32 v13, v14, 1, v13"); I("v_lshlrev_b32 v13, 7, v13"); I(f"v_lshl_add_u32 v13, {i}, 3, v13")
    I(f"s_lshl_b32 s63, s{S_NQ}, 1"); I(f"s_and_b32 s{S_TMP}, s{S_W}, 1"); I(f"s_add_u32 s63, s63, s{S_TMP}"); I("s_lshl_b32 s63, s63, 9")
    I(f"s_lshl_b32 s61, s{S_R}, 12"); I(f"s_add_u32 s61, s61, {WS_ST}"); I("s_add_u32 s63, s63, s61")
    st.vm(f"buffer_store_dwordx2 {pr(T)}, v13, s[{SRD_WS}:{SRD_WS+3}], s63 offen sc1", ("SS", 0))
    for l in stamp_lines(opt, 3): I(l)
    st.wait_vm(("D", 9))
    I("s_barrier")
    for hh in range(2): bread(0, hh)
    for t in range(9): aread(0, t)
    fill = {}
    spread(dlist(12), 0, 8)
    I(f"s_lshl_b32 s62, s62, 2")
    def flag():
        I(f"s_cmp_eq_u32 s{S_W}, 0"); I("s_cbranch_scc0 L1_noflag")
        I(f"s_add_u32 s{S_TMP}, s62, s{S_NQ}"); I("v_mov_b32 v13, 1"); I(f"v_mov_b32 v14, s{S_TMP}")
        I(f"buffer_store_byte v13, v14, s[{SRD_D}:{SRD_D+3}], 0 offen sc1")
        I("L1_noflag:")
    FP = opt.get("flagpair", 2)
    for s in range(16):
        base = s * 9
        if s & 1 and s < 15:
            K = 9 + ((s + 1) >> 1)
            at(base, lambda K=K: st.wait_vm(("D", K)))
            if K == 9 + FP: at(base, lambda: st.wait_vm(("SS", 0)))
            at(base, lambda: I("s_barrier"))
            if K == 9 + FP: at(base, flag)
            spread(dlist(K + 3), base + 1, base + 17)
        if s + 1 < 16:
            for hh in range(2): at(base + 1, lambda s=s, hh=hh: bread(s + 1, hh))
            for t in range(9): at(base + 1 + (t * 6) // 9, lambda s=s, t=t: aread(s + 1, t))
    ZF = V_WF + 8
    at(13 * 9 + 7, lambda: I(f"v_add_u32 v13, {LZ - 20480}, v{V_BT}"))
    at(12 * 9 + 8, lambda: I("v_mov_b32 v15, s62"))
    at(13 * 9 + 2, lambda: st.vm(f"buffer_load_dword v15, v15, s[{SRD_D}:{SRD_D+3}], 0 offen sc1", ("PL", 0)))
    for hh in range(2): at(15 * 9 + 1 + hh, lambda hh=hh: st.lg(f"ds_read_b64_tr_b16 v[{ZF+2*hh}:{ZF+2*hh+1}], v13 offset:{hh * 512}", ("ZR", 0)))
    gi = 0
    for s in range(16):
        st.wait_lg(("G", s))
        for t in range(9):
            ar = (s % 2) * 36 + t * 4; br = V_WF + (s % 2) * 4
            I(f"v_mfma_f32_16x16x32_bf16 v[{acw(t)}:{acw(t)+3}], a[{ar}:{ar+3}], v[{br}:{br+3}], v[{acw(t)}:{acw(t)+3}]")
            for fn in fill.get(gi, []): fn()
            gi += 1
    for l in stamp_lines(opt, 4): I(l)
    ufl = opt.get("ustflag", "")
    I(f"s_mul_i32 s63, s{S_CP}, 3"); I(f"s_add_u32 s{S_TMP}, s{S_CP}, 1"); I(f"s_cmp_lt_u32 s{S_CB}, 8"); I(f"s_cselect_b32 s63, s63, s{S_TMP}")
    I(f"s_lshl_b32 s{S_TMP}, s{S_NB}, 2"); I(f"s_add_u32 s63, s63, s{S_TMP}"); I(f"s_mul_i32 s63, s63, {USTREAM}")
    I(f"s_and_b32 s{S_TMP}, s{S_CB}, 7"); I(f"s_lshl_b32 s{S_TMP}, s{S_TMP}, 12"); I(f"s_add_u32 s63, s63, s{S_TMP}"); I(f"s_add_u32 s63, s63, s{S_M1K}")
    I(f"s_add_u32 s63, s63, {WS_U + 196608}")
    I(f"v_lshlrev_b32 v14, 4, {lane}")
    st.wait_lg(("ZR", 0))
    st.vm(f"buffer_store_dwordx4 v[{ZF}:{ZF+3}], v14, s[{SRD_WS}:{SRD_WS+3}], s63 offen {ufl}", ("US", 0))
    U1 = V_ACW + 36
    for di in range(3):
        for rp in range(2):
            g0, g1, g2 = [acw(di * 3 + dj) + 2 * rp for dj in range(3)]
            u = U1 + di * 4 + 2 * rp
            I(f"v_pk_add_f32 {pr(T)}, {pr(g0)}, {pr(g2)}")
            I(f"v_pk_mul_f32 {pr(T)}, {pr(T)}, 0.5 op_sel_hi:[1,0]")
            I(f"v_pk_fma_f32 {pr(u)}, {pr(g1)}, 0.5, {pr(T)} op_sel_hi:[1,0,1]")
            I(f"v_pk_fma_f32 {pr(g1)}, {pr(g1)}, -0.5, {pr(T)} op_sel_hi:[1,0,1]")
    def ureg(p, di): return {0: acw(di * 3), 1: U1 + di * 4, 2: acw(di * 3 + 1), 3: acw(di * 3 + 2)}[p]
    M = T
    I(f"v_max3_f32 v{M}, |v{V_ACW}|, |v{V_ACW+1}|, |v{V_ACW+2}|"); I(f"v_max3_f32 v{M+1}, |v{V_ACW+3}|, |v{V_ACW+4}|, |v{V_ACW+5}|")
    for n in range(21):
        r = V_ACW + 6 + 2 * n
        I(f"v_max3_f32 v{M + (n & 1)}, |v{r}|, |v{r+1}|, v{M + (n & 1)}")
    I(f"v_max_f32 v{M}, v{M}, v{M+1}")
    for sh in (1, 2, 4, 8):
        I("s_nop 1"); I(f"v_max_f32_dpp v{M}, v{M}, v{M} row_ror:{sh} row_mask:0xf bank_mask:0xf")
    I(f"v_mov_b32 v{M+1}, v{M}"); I("s_nop 1")
    I(f"v_permlane32_swap_b32 v{M}, v{M+1}"); I(f"v_max_f32 v{M}, v{M}, v{M+1}")
    I(f"v_mov_b32 v{M+1}, v{M}"); I("s_nop 1")
    I(f"v_permlane16_swap_b32 v{M}, v{M+1}"); I(f"v_max_f32 v{M}, v{M}, v{M+1}")
    I(f"s_lshl_b32 s63, s{S_W}, 2"); I(f"s_add_u32 s63, s63, {LMX}"); I(f"v_mov_b32 v{M+1}, s63")
    st.lg(f"ds_write_b32 v{M+1}, v{M}", ("MW", 0))
    st.wait_vm(("PL", 0))
    I("L1_poll:")
    I("v_readfirstlane_b32 s63, v15")
    I("s_nop 3")
    I("s_cmp_eq_u32 s63, 0x01010101")
    I("s_cbranch_scc1 L1_polled")
    I("s_sleep 2")
    I("v_mov_b32 v15, s62")
    I(f"buffer_load_dword v15, v15, s[{SRD_D}:{SRD_D+3}], 0 offen sc1")
    I("s_waitcnt vmcnt(0)")
    I("s_branch L1_poll")
    I("L1_polled:")
    st.wait_lg(("MW", 0))
    I("s_barrier")
    SV = V_TMP
    for k in range(4):
        st.vm(f"buffer_load_dwordx4 v[{SV+4*k}:{SV+4*k+3}], v14, s[{SRD_WS}:{SRD_WS+3}], s61 offen offset:{k*1024} sc1", ("SL", 0))
    I(f"v_mov_b32 v13, {LMX}")
    st.lg(f"ds_read_b128 v[{M}:{M+3}], v13", ("MR", 0))
    st.wait_lg(("MR", 0))
    I(f"v_max3_f32 v{M}, v{M}, v{M+1}, v{M+2}"); I(f"v_max_f32 v{M}, v{M}, v{M+3}")
    I("s_nop 0")
    I(f"v_readfirstlane_b32 s63, v{M}")
    I("s_nop 3")
    I("s_lshr_b32 s63, s63, 23")
    I("s_sub_i32 s63, 143, s63"); I("s_and_b32 s63, s63, -4"); I("s_sub_i32 s63, s63, 2"); I("s_min_i32 s63, s63, 102")
    I("s_add_i32 s64, s63, 127"); I("s_lshl_b32 s64, s64, 23"); I("s_mov_b32 s65, s64")
    I(f"s_mul_i32 s66, s{S_NB}, {4 * USTREAM}"); I(f"s_mul_i32 s{S_TMP}, s{S_CB}, 12288"); I(f"s_add_u32 s66, s66, s{S_TMP}"); I(f"s_add_u32 s66, s66, s{S_M1K}")
    I(f"s_lshl_b32 s{S_TMP}, s{S_CP}, 9"); I(f"s_add_u32 s66, s66, s{S_TMP}"); I(f"s_add_u32 s66, s66, {WS_U}")
    I(f"v_and_b32 v13, 1, {g}"); I(f"v_mul_u32_u24 v13, {USTREAM}, v13"); I(f"v_lshrrev_b32 v15, 1, {g}"); I("v_lshl_add_u32 v13, v15, 8, v13"); I(f"v_lshl_add_u32 v13, {i}, 4, v13")
    n = 0
    for pp in range(2):
        for di in range(3):
            h = T + 8 + (n % 3) * 4; n += 1
            for k in range(2):
                u = ureg(2 * pp + k, di)
                I(f"v_pk_mul_f32 {pr(u)}, {pr(u)}, s[64:65]"); I(f"v_pk_mul_f32 {pr(u+2)}, {pr(u+2)}, s[64:65]")
                I(f"v_cvt_pk_f16_f32 v{h+2*k}, v{u}, v{u+1}"); I(f"v_cvt_pk_f16_f32 v{h+2*k+1}, v{u+2}, v{u+3}")
            I(f"s_add_u32 s{S_TMP}, s66, {pp * 2 * USTREAM + di * 4096}"); I("s_nop 0")
            I(f"v_permlane16_swap_b32 v{h}, v{h+2}"); I(f"v_permlane16_swap_b32 v{h+1}, v{h+3}")
            st.vm(f"buffer_store_dwordx4 v[{h}:{h+3}], v13, s[{SRD_WS}:{SRD_WS+3}], s{S_TMP} offen {ufl}", ("US", 1))
    I(f"s_lshl_b32 s66, s{S_NB}, 5"); I(f"s_lshl_b32 s{S_TMP}, s{S_CB}, 1"); I(f"s_add_u32 s66, s66, s{S_TMP}"); I(f"s_add_u32 s66, s66, s{S_CP}")
    I("s_lshl_b32 s66, s66, 2"); I(f"s_add_u32 s66, s66, {WS_SC}")
    I(f"v_mov_b32 v{M}, s63"); I(f"v_mov_b32 v{M+1}, s66")
    st.vm(f"buffer_store_dword v{M}, v{M+1}, s[{SRD_WS}:{SRD_WS+3}], 0 offen", ("US", 2))
    for l in stamp_lines(opt, 5): I(l)
    st.wait_vm(("SL", 0))
    A_, B_ = T, T + 2
    for e, dst in ((0, A_), (2, B_)):
        I(f"v_pk_add_f32 {pr(dst)}, {pr(SV+e)}, {pr(SV+4+e)}"); I(f"v_pk_add_f32 {pr(dst+4)}, {pr(SV+8+e)}, {pr(SV+12+e)}")
    for dst in (A_, B_): I(f"v_pk_add_f32 {pr(dst)}, {pr(dst)}, {pr(dst+4)}")
    for k in range(4): I(f"v_mov_b32 v{T+4+k}, v{T+k}")
    I("s_nop 0")
    for k in range(4): I(f"v_permlane32_swap_b32 v{T+k}, v{T+4+k}")
    I(f"v_pk_add_f32 {pr(A_)}, {pr(A_)}, {pr(T+4)}"); I(f"v_pk_add_f32 {pr(B_)}, {pr(B_)}, {pr(T+6)}")
    I(f"v_mul_f32 v{A_}, 0x3e000000, v{A_}"); I(f"v_mul_f32 v{B_}, 0x3e000000, v{B_}")
    for e, src, dd in ((0, A_, T + 4), (2, B_, T + 5)):
        for k in range(4):
            I(f"v_sub_f32 v{SV+4*k+e}, v{SV+4*k+e}, v{src}")
        I(f"v_mul_f32 v{dd}, v{SV+e}, v{SV+e}")
        for k in range(1, 4): I(f"v_fmac_f32 v{dd}, v{SV+4*k+e}, v{SV+4*k+e}")
    I(f"v_mov_b32 v{T+6}, v{T+4}"); I(f"v_mov_b32 v{T+7}, v{T+5}"); I("s_nop 1")
    I(f"v_permlane32_swap_b32 v{T+4}, v{T+6}"); I(f"v_permlane32_swap_b32 v{T+5}, v{T+7}")
    I(f"v_pk_add_f32 {pr(T+4)}, {pr(T+4)}, {pr(T+6)}")
    I("s_mov_b32 s63, 0x42800000"); I("s_mov_b32 s64, 0x3b000000"); I("s_mov_b32 s65, 0x3727c5ac"); I("s_mov_b32 s66, 0xbfb8aa3b"); I("s_mov_b32 s67, 0x3a800000")
    O = T + 8
    for n, (src, dd) in enumerate(((A_, T + 4), (B_, T + 5))):
        o = O + 4 * n
        I(f"v_fmac_f32 v{src+1}, s63, v{dd}")
        I(f"v_mov_b32 v{o+3}, s65"); I(f"v_fmac_f32 v{o+3}, s64, v{src+1}")
        I(f"v_rsq_f32 v{o+1}, v{o+3}"); I(f"v_sqrt_f32 v{o+2}, v{o+3}"); I(f"v_mov_b32 v{o}, v{src}")
        I(f"v_mul_f32 v{o+1}, s66, v{o+1}"); I(f"v_mul_f32 v{o+2}, s67, v{o+2}")
    I(f"v_and_b32 v13, 31, {lane}"); I("v_lshlrev_b32 v13, 5, v13"); I(f"s_add_u32 s63, s{S_M1K}, {LST}"); I("v_add_u32 v13, s63, v13")
    st.lg(f"ds_write_b128 v13, v[{O}:{O+3}]", ("BW", 0)); st.lg(f"ds_write_b128 v13, v[{O+4}:{O+7}] offset:16", ("BW", 0))
    I(f"v_lshlrev_b32 v13, 4, {i}"); I("v_add_u32 v13, s63, v13")
    KQ = SV
    st.wait_lg(("BW", 0))
    for q in range(4): st.lg(f"ds_read_b128 v[{KQ+4*q}:{KQ+4*q+3}], v13 offset:{q*256}", ("BR", q))
    HS = V_WF
    for q in range(4):
        st.wait_lg(("BR", q))
        k = KQ + 4 * q
        I(f"v_sub_f32 v{k}, v{k}, v{V_MU+2*q}")
        tb = T
        for e in range(8):
            y = acc(q, e >> 1) + 2 * (e & 1)
            I(f"v_pk_add_f32 {pr(y)}, {pr(y)}, {pr(k)} op_sel_hi:[1,0]")
            I(f"v_pk_mul_f32 {pr(tb+2*e)}, {pr(y)}, {pr(k)} op_sel:[0,1] op_sel_hi:[1,1]")
        for e in range(16): I(f"v_exp_f32 v{tb+e}, v{tb+e}")
        for e in range(8): I(f"v_pk_fma_f32 {pr(tb+2*e)}, {pr(tb+2*e)}, {pr(k+2)}, {pr(k+2)} op_sel_hi:[1,0,0]")
        for e in range(16): I(f"v_rcp_f32 v{tb+e}, v{tb+e}")
        for e in range(8):
            y = acc(q, e >> 1) + 2 * (e & 1)
            I(f"v_pk_mul_f32 {pr(tb+2*e)}, {pr(tb+2*e)}, {pr(y)}")
        for jp in range(2):
            h = HS + (q * 2 + jp) * 4
            for d in range(4): I(f"v_cvt_pk_f16_f32 v{h+d}, v{tb + jp*8 + 2*d}, v{tb + jp*8 + 2*d + 1}")
            so = ["0", "s48", "s49", "s50"][(q >> 1) * 2 + jp]
            I(f"buffer_store_dwordx4 v[{h}:{h+3}], v{V_ST}, s[{SRD_WS}:{SRD_WS+3}], {so} offen offset:{(q & 1) * 560} {fl}")
            if q == 2:
                t = acc(0, 0) + jp * 4
                h1 = HS + (2 + jp) * 4
                for d in range(4):
                    I(f"v_cndmask_b32 v{t+d}, 0, v{h+d}, s[44:45]"); I(f"v_cndmask_b32 v{t+d}, v{t+d}, v{h1+d}, s[46:47]")
                I(f"buffer_store_dwordx4 v[{t}:{t+3}], v{V_SH}, s[{SRD_WS}:{SRD_WS+3}], {['0', 's48'][jp]} offen {fl}")
    for l in stamp_lines(opt, 6): I(l)
    for l in stamp_store(opt, 0, SRD_WS, S_W, 16): I(l)
    for l in st.resolve(): a(l)
    a.label("L1_end")
    a("s_endpgm")
```

```python
from asmlib import *

WS_H = 0
H_HK = 128 * 1088
H_SIZE = 64 * H_HK
WS_HZ = 10 << 20
WS_U = 18 << 20
USTREAM = 16 * 12288 + 32768
WS_SC = 26 << 20
WS_ST = 27 << 20
SLOT = 24576

S_P = 3
SRD_H = 8; SRD_WS = 12; SRD_XF = 16; SRD_OUT = 20
S_HOFF = 24; S_UOFF = 25; S_CNT = 26; S_HZOFF = 27; S_SIG = 28; S_INV = 29; S_M0B = 30
S_OO = 48
S_R = 32
S_R2 = 80
V_RS = 126
V_U0, V_U1, V_U2 = 1, 2, 3
V_LX0, V_LY0, V_LX1, V_LY1 = 4, 5, 6, 7
V_DMA = 8
V_EW0, V_EW1, V_ER0, V_ER1, V_OUT, V_T = 14, 15, 16, 17, 18, 19
V_EW2, V_EW3 = 124, 125
V_RAW = 20
V_V = 60
V_HZ = 76
V_ACC = 128
F = [0, 4, 12, 24, 36, 48, 60, 72, 84, 92]

def acc(y, j): return V_ACC + (y * 4 + j) * 4

WS_STAMP = 32 << 20
S_ST = 70
def stamp_lines(opt, k, cyc=False):
    if not opt.get("stamp"): return []
    return [f"{'s_memtime' if cyc else 's_memrealtime'} s[100:101]", "s_waitcnt lgkmcnt(0)", f"s_mov_b32 s{S_ST+k}, s100"]
def stamp_store(opt, kern, srdws, sw, vt):
    if not opt.get("stamp"): return []
    l = ["s_waitcnt vmcnt(0)"] + stamp_lines(opt, 7) + stamp_lines(opt, 9, True)
    l += ["s_lshl_b32 s100, s2, 2", f"s_add_u32 s100, s100, s{sw}", "s_lshl_b32 s100, s100, 6", f"s_add_u32 s100, s100, {WS_STAMP + kern * 131072}",
          f"v_mov_b32 v{vt+4}, s100"]
    for b in range(3):
        for k in range(4):
            l.append(f"v_mov_b32 v{vt+k}, s{S_ST + min(b*4+k, 9)}")
        l.append(f"buffer_store_dwordx4 v[{vt}:{vt+3}], v{vt+4}, s[{srdws}:{srdws+3}], 0 offen offset:{b*16}")
        l.append("s_nop 1")
    return l

class Stream:
    def __init__(self):
        self.items = []
    def ins(self, t): self.items.append(("i", t, None))
    def vm(self, t, tag): self.items.append(("vm", t, tag))
    def lg(self, t, tag): self.items.append(("lg", t, tag))
    def wait_vm(self, tag): self.items.append(("wvm", None, tag))
    def wait_lg(self, tag): self.items.append(("wlg", None, tag))
    def mark(self, name): self.items.append(("mark", name, None))
    def resolve(self):
        vm, lg, out = [], [], []
        vdone = ldone = 0
        for k, t, tag in self.items:
            if k == "i": out.append(t)
            elif k == "mark": out.append("@" + t)
            elif k == "vm":
                vm.append(tag); out.append(t); assert len(vm) - vdone <= 63, ("vm overflow", tag)
            elif k == "lg":
                lg.append(tag); out.append(t); assert len(lg) - ldone <= 15, ("lgkm overflow", tag)
            elif k == "wvm":
                idx = max(i for i, x in enumerate(vm) if x == tag)
                n = len(vm) - 1 - idx
                if idx + 1 <= vdone: continue
                vdone = idx + 1
                out.append(f"s_waitcnt vmcnt({n})")
            elif k == "wlg":
                if tag is None: n = 0
                else:
                    idx = max(i for i, x in enumerate(lg) if x == tag)
                    n = len(lg) - 1 - idx
                if len(lg) - n <= ldone: continue
                ldone = len(lg) - n
                out.append(f"s_waitcnt lgkmcnt({n})")
        return out

def hz_reg(f):
    if f < 16: return ("a", 192 + 4 * f)
    if f < 28: return ("v", V_HZ + 4 * (f - 16))
    if f < 44: return ("a", 128 + 4 * (f - 28))
    if f < 60: return ("a", 192 + 4 * (f - 44))
    return ("v", V_HZ + 4 * (f - 60))

def rng(p, b, n=4): return f"{p}[{b}:{b+n-1}]"

def b_load(st, step, k):
    sl = step % 4
    r = sl * 48 + k * 4
    st.vm(f"buffer_load_dwordx4 a[{r}:{r+3}], v{V_U0 + k // 4}, s[{SRD_WS}:{SRD_WS+3}], s{S_UOFF} offen offset:{(k % 4) * 1024}", ("B", step))

def dma_m0(st, step, k):
    st.ins(f"s_add_u32 m0, s{S_M0B}, {(step % 4) * SLOT + k * 4096}")

def dma(st, step, k):
    st.vm(f"buffer_load_dwordx4 v{V_DMA + k}, s[{SRD_H}:{SRD_H+3}], s{S_HOFF} offen lds", ("D", step))

def raw_read(st, step, r, which):
    g = step * 10 + r
    reg = V_RAW + (g % 5) * 8 + which * 4
    sl = step % 4
    va = (V_LX0 if sl < 2 else V_LX1) + which
    off = (sl % 2) * SLOT + r * 1088
    st.lg(f"ds_read_b128 v[{reg}:{reg+3}], v{va} offset:{off}", ("R", g, which))

def vcalc(st, step, r, d, scaled, phase):
    g = step * 10 + r
    x = V_RAW + (g % 5) * 8 + d
    v = V_V + (g % 4) * 4 + d
    if phase == 0:
        st.ins(f"v_pk_fma_f16 v{v}, v{x+4}, s{S_SIG}, v{x}")
    else:
        st.ins(f"v_pk_mul_f16 v{v}, v{v}, s{S_R + (step % 4 if step < 12 else step - 12) + (4 if scaled == 'next' else 0)}")

def hz_load(st, f):
    y, kc = f // 8, f % 8
    p, b = hz_reg(f)
    st.vm(f"buffer_load_dwordx4 {rng(p, b)}, v{V_U0 + kc // 4}, s[{SRD_WS}:{SRD_WS+3}], s{S_HZOFF} offen offset:{(kc % 4) * 1024}", ("Z", f))
    if kc == 7: st.ins(f"s_add_u32 s{S_HZOFF}, s{S_HZOFF}, 0x10000")

def build_main(scaled, opt):
    st = Stream()
    for k in range(12): st.vm("#pro", ("B", 0))
    for s in range(2):
        for k in range(6): st.vm("#pro", ("D", s))
    for k in range(12): st.vm("#pro", ("B", 1))
    st.wait_vm(("D", 0))
    st.ins("s_barrier")
    for l in stamp_lines(opt, 1) + stamp_lines(opt, 5, True): st.ins(l)
    fill = {}
    def at(idx, fn): fill.setdefault(idx, []).append(fn)
    NST = 16
    LR, LV = opt.get("LR", 28), opt.get("LV", 8)
    vpos = opt.get("vpos", [1, 10, 14, 20, 24, 30, 34, 38, 46, 50, 56, 62, 66, 70, 75, 79, 83, 90])
    xpos = [3, 26, 48, 71]
    for s in range(NST):
        base = s * 96
        for r in range(10):
            f0 = base + F[r]
            at(f0 - LR, lambda s=s, r=r: raw_read(st, s, r, 0))
            at(f0 - LR + 1, lambda s=s, r=r: raw_read(st, s, r, 1))
            at(f0 - LV, lambda s=s, r=r: st.wait_lg(("R", s * 10 + r, 1)))
            for d in range(4):
                at(f0 - LV + d, lambda s=s, r=r, d=d: vcalc(st, s, r, d, None, 0))
                if scaled:
                    pos = f0 - LV + d + 1
                    def mul(s=s, r=r, d=d, pos=pos):
                        g = s * 10 + r
                        v = V_V + (g % 4) * 4 + d
                        st.ins(f"v_pk_mul_f16 v{v}, v{v}, v{V_RS + s % 2}")
                    if r == 0 and d == 0:
                        def setr(s=s, pos=pos - 3):
                            it = min((max(pos, 0) // 96) // 4, 3)
                            st.ins(f"v_lshrrev_b32 v{V_RS + s % 2}, v{V_T}, s{S_R + s - 4 * it}")
                            st.ins(f"v_perm_b32 v{V_RS + s % 2}, v{V_RS + s % 2}, v{V_RS + s % 2}, s31")
                        at(pos - 3, setr)
                    at(pos, mul)
        if s < 15:
            at(base + 59, lambda s=s: st.wait_vm(("D", s + 1)))
            at(base + 59, lambda: st.ins("s_barrier"))
            at(base + 95, lambda s=s: st.wait_vm(("B", s + 1)))
        if s <= 13:
            for k in range(6):
                at(base + vpos[k] - 1, lambda s=s, k=k: dma_m0(st, s + 2, k))
                at(base + vpos[k], lambda s=s, k=k: dma(st, s + 2, k))
            at(base + vpos[5] + 1, lambda: st.ins(f"s_add_u32 s{S_HOFF}, s{S_HOFF}, {4 * H_HK}"))
            for k in range(12):
                at(base + vpos[6 + k], lambda s=s, k=k: b_load(st, s + 2, k))
            at(base + vpos[17] + 1, lambda: st.ins(f"s_add_u32 s{S_UOFF}, s{S_UOFF}, 12288"))
            if s >= 12:
                for n in range(4): at(base + xpos[n], lambda f=(s - 12) * 4 + n: hz_load(st, f))
        elif s == 14:
            for k in range(12): at(base + vpos[k], lambda k=k: b_load(st, 16, k))
            at(base + vpos[11] + 1, lambda: st.ins(f"s_add_u32 s{S_UOFF}, s{S_UOFF}, 12288"))
            for k in range(6): at(base + vpos[12 + k], lambda k=k: b_load(st, 17, k))
            for n in range(2): at(base + xpos[n], lambda f=8 + n: hz_load(st, f))
        else:
            for k in range(6, 12): at(base + vpos[k - 6], lambda k=k: b_load(st, 17, k))
            at(base + vpos[5] + 1, lambda: st.ins(f"s_add_u32 s{S_UOFF}, s{S_UOFF}, 12288"))
            for k in range(8): at(base + vpos[6 + k], lambda k=k: b_load(st, 18, k))
            for n in range(4): at(base + vpos[14 + n], lambda f=10 + n: hz_load(st, f))
            for n in range(2): at(base + 92 + 2 * n, lambda f=14 + n: hz_load(st, f))
    def scale(y, e):
        r = acc(y, 0) + e
        st.ins(f"v_mul_f32 v{r}, s{S_INV}, v{r}")
    for e in range(16):
        at(15 * 96 + 40 + e, lambda e=e: scale(0, e))
    Z0 = 16 * 96
    def ex_write(y, j):
        va = [V_EW0, V_EW1, V_EW2, V_EW3][(y // 4) * 2 + (j >> 1)]
        st.lg(f"ds_write_b128 v{va}, v[{acc(y,j)}:{acc(y,j)+3}] offset:{(y % 4) * 16384 + (j & 1) * 1024}", ("W", y))
    for y in range(8):
        zb = Z0 + y * 32
        if y < 7:
            for e in range(16):
                at(zb + 8 + e, lambda y=y, e=e: scale(y + 1, e))
        if y >= 1:
            for j in range(4):
                def wr(y=y - 1, j=j):
                    if j == 0 and y >= 2: st.wait_lg(("W", y - 2))
                    ex_write(y, j)
                at(zb + 8 + 2 * j, wr)
    for n, f in enumerate(range(16, 44)): at(Z0 + 1 + 2 * n, lambda f=f: hz_load(st, f))
    at(Z0 + 20, lambda: st.ins("s_barrier"))
    for n, f in enumerate(range(44, 60)): at(Z0 + 64 + 1 + 2 * n, lambda f=f: hz_load(st, f))
    for n, f in enumerate(range(60, 64)): at(Z0 + 96 + 1 + 2 * n, lambda f=f: hz_load(st, f))
    XF = V_RAW
    def oso(rs, u): return "0" if rs + u == 0 else f"s{S_OO + rs * 2 + u - 1}"
    def xf_load(rs, u, par):
        r = XF + ((rs * 2 + u) * 2 + par) * 4
        st.vm(f"buffer_load_dwordx4 v[{r}:{r+3}], v{V_OUT}, s[{SRD_XF}:{SRD_XF+3}], {oso(rs, u)} offen offset:{par*1024} {opt.get('fxf','')}", ("X", rs))
    n = 0
    for rs in range(2):
        for u in range(2):
            for par in range(2):
                at(Z0 + 96 + 10 + 2 * n, lambda rs=rs, u=u, par=par: xf_load(rs, u, par)); n += 1
    at(Z0 + 128 + 24, lambda: st.wait_lg(("W", 3)))
    at(Z0 + 128 + 24, lambda: st.ins("s_barrier"))
    M = V_ACC
    def mreg(p, j): return M + (p * 4 + j) * 4
    def m_read(rs, p, j):
        va = V_ER0 if rs == 0 else V_ER1
        st.lg(f"ds_read_b128 v[{mreg(p,j)}:{mreg(p,j)+3}], v{va} offset:{p*4096 + j*1024}", ("M", rs, j))
    def final_ops(rs, part):
        ops = []
        T = V_V
        for j in ([part] if part < 4 else []):
            ops.append(lambda j=j: st.wait_lg(("M", rs, j)))
            for hh in range(2):
                m0, m1, m2, m3 = [mreg(p, j) + 2 * hh for p in range(4)]
                ops.append(lambda m0=m0, m1=m1: st.ins(f"v_pk_add_f32 v[{m0}:{m0+1}], v[{m0}:{m0+1}], v[{m1}:{m1+1}]"))
                ops.append(lambda m3=m3, m1=m1: st.ins(f"v_pk_add_f32 v[{m3}:{m3+1}], v[{m1}:{m1+1}], v[{m3}:{m3+1}] neg_lo:[0,1] neg_hi:[0,1]"))
                ops.append(lambda m0=m0, m2=m2: st.ins(f"v_pk_add_f32 v[{m0}:{m0+1}], v[{m0}:{m0+1}], v[{m2}:{m2+1}]"))
                ops.append(lambda m3=m3, m2=m2: st.ins(f"v_pk_add_f32 v[{m3}:{m3+1}], v[{m3}:{m3+1}], v[{m2}:{m2+1}] neg_lo:[0,1] neg_hi:[0,1]"))
        if part < 4: return ops
        ops.append(lambda: st.wait_vm(("X", rs)))
        n = 0
        for u in range(2):
            for par in range(2):
                xr = XF + ((rs * 2 + u) * 2 + par) * 4
                for d in range(4):
                    y0 = mreg(0 if par == 0 else 3, u * 2 + (d >> 1)) + 2 * (d & 1)
                    t = T + (n % 8) * 2; n += 1
                    ops.append(lambda t=t, x=xr + d: st.ins(f"v_lshlrev_b32 v{t}, 16, v{x}"))
                    ops.append(lambda t=t, x=xr + d: st.ins(f"v_and_b32 v{t+1}, 0xffff0000, v{x}"))
                    ops.append(lambda t=t, y0=y0: st.ins(f"v_pk_add_f32 v[{y0}:{y0+1}], v[{y0}:{y0+1}], v[{t}:{t+1}]"))
                    ops.append(lambda d=d, xr=xr, y0=y0: st.ins(f"v_cvt_pk_bf16_f32 v{xr+d}, v{y0}, v{y0+1}"))
                ops.append(lambda xr=xr, u=u, par=par: st.vm(f"buffer_store_dwordx4 v[{xr}:{xr+3}], v{V_OUT}, s[{SRD_OUT}:{SRD_OUT+3}], {oso(rs, u)} offen offset:{par*1024} {opt.get('oflag','')}", ("S", rs)))
        return ops
    rpos = {0: Z0 + 128 + 25, 1: Z0 + 128 + 29, 2: Z0 + 160 + 20, 3: Z0 + 160 + 24}
    cpos = {0: Z0 + 160 + 3, 1: Z0 + 160 + 15, 2: Z0 + 192 + 0, 3: Z0 + 192 + 4}
    for j in range(4):
        for p in range(4):
            at(rpos[j] + p, lambda p=p, j=j: m_read(0, p, j))
        for n, op in enumerate(final_ops(0, j)):
            at(cpos[j] + max(0, n - 1) // 2, op)
    fo = final_ops(0, 4)
    start = Z0 + 192 + 16
    endp = Z0 + 256 - 2
    for n, op in enumerate(fo):
        at(start + (n * (endp - start)) // len(fo), op)
    for idx in sorted(k for k in fill if k < 0):
        for fn in fill[idx]: fn()
    st.ins("s_nop 1")
    gi = 0
    for s in range(NST):
        if s % 4 == 0: st.mark(f"it{s//4}")
        for r in range(10):
            g = s * 10 + r
            v = V_V + (g % 4) * 4
            for dy in range(3):
                y = r - dy
                if y < 0 or y > 7: continue
                for j in range(4):
                    u = (s % 4) * 48 + (dy * 4 + j) * 4
                    if gi % 96 == 0 and s < 3 and False: pass
                    st.ins(f"v_mfma_f32_16x16x32_f16 v[{acc(y,j)}:{acc(y,j)+3}], a[{u}:{u+3}], v[{v}:{v+3}], v[{acc(y,j)}:{acc(y,j)+3}]")
                    for fn in fill.get(gi, []): fn()
                    gi += 1
    st.mark("z2")
    for l in stamp_lines(opt, 2) + stamp_lines(opt, 6, True): st.ins(l)
    for y in range(8):
        for kc in range(8):
            f = y * 8 + kc
            if kc % 4 == 0:
                st.wait_vm(("Z", f + 3))
                if y == 0 and kc == 0: st.wait_vm(("B", 18))
            p, b = hz_reg(f)
            for j in range(4):
                u = (kc * 4 + j) * 4
                st.ins(f"v_mfma_f32_16x16x32_bf16 v[{acc(y,j)}:{acc(y,j)+3}], a[{u}:{u+3}], {rng(p,b)}, v[{acc(y,j)}:{acc(y,j)+3}]")
                for fn in fill.get(gi, []): fn()
                gi += 1
    assert all(k < gi for k in fill)
    for l in stamp_lines(opt, 3): st.ins(l)
    st.ins("s_nop 7")
    for j in range(4): ex_write(7, j)
    st.wait_lg(("W", 7))
    st.ins("s_barrier")
    for j in range(3):
        for p in range(4): m_read(1, p, j)
    for op in final_ops(1, 0): op()
    for p in range(4): m_read(1, p, 3)
    for part in range(1, 5):
        for op in final_ops(1, part): op()
    for l in stamp_lines(opt, 4): st.ins(l)
    for l in stamp_store(opt, 1, SRD_WS, S_P, 60): st.ins(l)
    return st.resolve()

def emit_main(a, lines, scaled, tag, opt={}):
    ab = opt.get("abl2", "")
    def keep(l):
        if "B" in ab and l.startswith("buffer_load_dwordx4 a[") : return False
        if "D" in ab and l.endswith("lds"): return False
        if "M" in ab and "m0" in l: return False
        if "R" in ab and l.startswith("ds_read_b128 v") and int(l.split("[")[1].split(":")[0]) < 60: return False
        if "V" in ab and l.startswith("v_pk_fma_f16"): return False
        if "S" in ab and l.startswith("s_barrier"): return False
        if "W" in ab and l.startswith("s_waitcnt") and "memtime" not in l: return False
        return True
    if ab:
        out = []
        for n, l in enumerate(lines):
            if n and "s_mem" in lines[n - 1]: out.append(l)
            elif keep(l): out.append(l)
        lines = out
    its = {}
    cur = "pre"; its[cur] = []
    for l in lines:
        if l.startswith("@"):
            cur = l[1:]; its[cur] = []
        elif l != "#pro":
            its[cur].append(l)
    assert its["it0"] == its["it1"] == its["it2"], "loop bodies differ"
    for l in its["pre"]: a(l)
    a(f"s_mov_b32 s{S_CNT}, 3")
    a.raw(".p2align 3")
    a.label(f"L2_loop{tag}")
    for l in its["it0"]: a(l)
    if scaled:
        for k in range(6): a(f"s_mov_b64 s[{S_R+2*k}:{S_R+2*k+1}], s[{S_R+4+2*k}:{S_R+5+2*k}]")
    a(f"s_sub_u32 s{S_CNT}, s{S_CNT}, 1")
    a(f"s_cmp_lg_u32 s{S_CNT}, 0")
    a(f"s_cbranch_scc1 L2_loop{tag}")
    for l in its["it3"]: a(l)
    for l in its["z2"]: a(l)
    a("s_endpgm")

def gen_k2(a, name, opt={}):
    kernel_begin(a, name)
    for l in stamp_lines(opt, 0) + stamp_lines(opt, 8, True): a(l)
    a("s_cmp_ge_u32 s2, 256")
    a("s_cbranch_scc1 L2_end")
    a("s_load_dwordx2 s[4:5], s[0:1], 64")
    a("s_load_dwordx2 s[6:7], s[0:1], 0")
    a("s_load_dwordx2 s[66:67], s[0:1], 48")
    a("v_lshrrev_b32 v19, 6, v0")
    a("v_and_b32 v20, 63, v0")
    a(f"v_lshlrev_b32 v{V_U0}, 4, v20")
    a(f"v_readfirstlane_b32 s{S_P}, v19")
    a(f"v_add_u32 v{V_U1}, 4096, v{V_U0}")
    a(f"v_add_u32 v{V_U2}, 8192, v{V_U0}")
    a("s_and_b32 s52, s2, 7"); a("s_lshr_b32 s53, s2, 3")
    if opt.get("map", 1) == 1:
        a("s_and_b32 s54, s52, 1"); a("s_lshl_b32 s54, s54, 2"); a("s_and_b32 s58, s53, 3"); a("s_add_u32 s54, s54, s58")
        a("s_lshr_b32 s55, s52, 1"); a("s_lshl_b32 s55, s55, 5"); a("s_lshr_b32 s58, s53, 3"); a("s_lshl_b32 s58, s58, 3"); a("s_add_u32 s55, s55, s58")
        a("s_lshr_b32 s56, s53, 2"); a("s_and_b32 s56, s56, 1"); a("s_lshl_b32 s56, s56, 4")
    else:
        a("s_and_b32 s54, s53, 7")
        a("s_lshl_b32 s55, s52, 4"); a("s_lshr_b32 s58, s53, 4"); a("s_lshl_b32 s58, s58, 3"); a("s_add_u32 s55, s55, s58")
        a("s_lshr_b32 s56, s53, 3"); a("s_and_b32 s56, s56, 1"); a("s_lshl_b32 s56, s56, 4")
    a("s_and_b32 s57, s55, 63")
    a("s_lshl_b32 s58, s54, 2"); a(f"s_add_u32 s58, s58, s{S_P}"); a(f"s_mul_i32 s{S_UOFF}, s58, {USTREAM}"); a(f"s_add_u32 s{S_UOFF}, s{S_UOFF}, {WS_U}")
    a(f"s_mov_b32 s{S_HOFF}, 0")
    a(f"s_lshl_b32 s{S_M0B}, s{S_P}, 10")
    a("s_waitcnt lgkmcnt(0)")
    srd(a, SRD_WS, 4, 0x10000000)
    def bl(step):
        st = Stream()
        for k in range(12): b_load(st, step, k)
        for l in st.resolve(): a(l)
        a(f"s_add_u32 s{S_UOFF}, s{S_UOFF}, 12288")
    bl(0)
    srd(a, SRD_H, 4, H_SIZE)
    a("s_lshl_b32 s58, s54, 7"); a(f"s_add_u32 s58, s58, {WS_SC}")
    a("s_add_u32 s60, s4, s58"); a("s_addc_u32 s61, s5, 0")
    a(f"s_load_dwordx16 s[{S_R}:{S_R+15}], s[60:61], 0")
    a(f"s_load_dwordx16 s[{S_R2}:{S_R2+15}], s[60:61], 64")
    a("s_sub_u32 s59, s55, 1"); a("s_mul_i32 s59, s59, 1088")
    a(f"s_mul_i32 s62, s56, {2 * H_HK // 16}"); a("s_add_u32 s59, s59, s62")
    a("s_cmp_eq_u32 s57, 0"); a("s_cselect_b32 s63, 68, 0")
    a("s_cmp_eq_u32 s57, 56"); a("s_movk_i32 s64, 680"); a("s_cselect_b32 s64, 612, s64"); a("s_sub_u32 s64, s64, s63")
    a("v_mov_b32 v26, 0x80000000")
    a("v_lshlrev_b32 v21, 4, v0"); a("v_add_u32 v21, s59, v21")
    a("v_subrev_u32 v22, s63, v0")
    for k in range(6):
        d = V_DMA + k
        if k == 2:
            a("v_cmp_gt_u32 vcc, 176, v0")
            a(f"v_mov_b32 v23, {512 - 688}"); a(f"v_mov_b32 v24, {(512 - 688) * 16 + H_HK}")
            a("v_mov_b32 v25, 512"); a("v_cndmask_b32 v23, v23, v25, vcc")
            a("v_mov_b32 v25, 8192"); a("v_cndmask_b32 v24, v24, v25, vcc")
            a("v_add_u32 v23, v22, v23"); a(f"v_add_u32 v{d}, v21, v24")
        else:
            e0 = 256 * k - (688 if k > 2 else 0)
            a(f"v_add_u32 v23, {e0}, v22"); a(f"v_add_u32 v{d}, {e0 * 16 + (H_HK if k > 2 else 0)}, v21")
        a("v_cmp_gt_u32 vcc, s64, v23")
        a("s_nop 1")
        a(f"v_cndmask_b32 v{d}, v26, v{d}, vcc")
    def dl(step):
        st = Stream()
        for k in range(6):
            dma_m0(st, step, k); st.ins("s_nop 0"); dma(st, step, k)
        for l in st.resolve(): a(l)
        a(f"s_add_u32 s{S_HOFF}, s{S_HOFF}, {4 * H_HK}")
    dl(0); dl(1)
    srd(a, SRD_XF, 6, 8 << 20)
    srd(a, SRD_OUT, 66, 8 << 20)
    a("v_lshrrev_b32 v21, 4, v20")
    a("v_and_b32 v22, 15, v20")
    a("v_and_b32 v23, 1, v21"); a("v_mul_u32_u24 v23, 688, v23")
    a("v_lshrrev_b32 v24, 1, v21"); a("v_mul_u32_u24 v24, 17, v24")
    a("v_add3_u32 v23, v23, v24, v22"); a("v_lshlrev_b32 v23, 4, v23")
    a("s_mov_b32 s58, 0"); a(f"s_cmp_eq_u32 s{S_P}, 0"); a(f"s_cselect_b32 s58, {34*16}, s58"); a(f"s_cmp_eq_u32 s{S_P}, 2"); a(f"s_cselect_b32 s58, {35*16}, s58")
    a(f"s_mov_b32 s59, {35*16}"); a(f"s_cmp_eq_u32 s{S_P}, 2"); a("s_cselect_b32 s59, 0, s59"); a(f"s_cmp_eq_u32 s{S_P}, 3"); a("s_cselect_b32 s59, 16, s59")
    a(f"v_add_u32 v{V_LX0}, s58, v23"); a(f"v_add_u32 v{V_LY0}, s59, v23")
    a(f"v_add_u32 v{V_LX1}, {2*SLOT}, v{V_LX0}"); a(f"v_add_u32 v{V_LY1}, {2*SLOT}, v{V_LY0}")
    a(f"s_mov_b32 s{S_SIG}, 0xbc00bc00"); a(f"s_cmp_eq_u32 s{S_P}, 1"); a(f"s_cselect_b32 s{S_SIG}, 0x3c003c00, s{S_SIG}")
    a("v_and_b32 v23, 7, v22"); a("v_xor_b32 v24, v21, v23"); a("v_lshlrev_b32 v24, 4, v24"); a("v_lshl_add_u32 v24, v23, 7, v24")
    a("v_lshrrev_b32 v23, 3, v22"); a("v_lshl_add_u32 v24, v23, 11, v24")
    a(f"s_lshl_b32 s58, s{S_P}, 12"); a(f"v_add_u32 v{V_EW0}, s58, v24"); a(f"v_xor_b32 v{V_EW1}, 64, v{V_EW0}")
    a(f"v_add_u32 v{V_EW2}, 0x10000, v{V_EW0}"); a(f"v_add_u32 v{V_EW3}, 0x10000, v{V_EW1}")
    a(f"s_lshl_b32 s58, s{S_P}, 14"); a(f"v_add_u32 v{V_ER0}, s58, v{V_U0}"); a(f"v_add_u32 v{V_ER1}, 0x10000, v{V_ER0}")
    a(f"s_add_u32 s58, s55, s{S_P}"); a("s_lshl_b32 s58, s58, 16"); a("s_lshl_b32 s59, s56, 11"); a("s_add_u32 s58, s58, s59")
    a("s_lshl_b32 s59, s54, 7"); a("s_add_u32 s58, s58, s59")
    a("v_lshrrev_b32 v23, 3, v20"); a("v_and_b32 v24, 7, v20"); a("v_xor_b32 v24, v24, v23"); a("v_lshlrev_b32 v24, 4, v24")
    a("v_lshl_add_u32 v24, v23, 11, v24"); a(f"v_add_u32 v{V_OUT}, s58, v24")
    a(f"s_mov_b32 s{S_OO}, 0x4000"); a(f"s_mov_b32 s{S_OO+1}, 0x40000"); a(f"s_mov_b32 s{S_OO+2}, 0x44000")
    a(f"s_add_u32 s58, s{S_P}, 1"); a(f"s_cmp_eq_u32 s{S_P}, 0"); a("s_cselect_b32 s58, 0, s58"); a(f"s_cmp_eq_u32 s{S_P}, 3"); a("s_cselect_b32 s58, 1, s58")
    a("s_lshl_b32 s58, s58, 14"); a("s_lshl_b32 s59, s56, 9"); a("s_add_u32 s58, s58, s59"); a("s_lshl_b32 s59, s55, 16"); a("s_add_u32 s58, s58, s59")
    a(f"s_add_u32 s{S_HZOFF}, s58, {WS_HZ}")
    for i in range(128): a(f"v_mov_b32 v{V_ACC+i}, 0")
    bl(1)
    a("s_waitcnt lgkmcnt(0)")
    a(f"s_mov_b32 s58, s{S_R}"); a(f"s_mov_b32 s59, s{S_R}")
    E = [S_R + k for k in range(16)] + [S_R2 + k for k in range(16)]
    for r in E[1:]:
        a(f"s_min_i32 s58, s58, s{r}"); a(f"s_max_i32 s59, s59, s{r}")
    a("s_sub_i32 s60, 117, s58"); a("s_max_i32 s60, s60, 1"); a("s_min_i32 s60, s60, 254"); a(f"s_lshl_b32 s{S_INV}, s60, 23")
    a("s_cmp_lg_u32 s58, s59")
    a("s_cbranch_scc1 L2_slow")
    emit_main(a, build_main(False, opt), False, "f", opt)
    a.label("L2_slow")
    for n, r in enumerate(E):
        a(f"s_sub_i32 s60, s{r}, s58")
        a("s_sub_i32 s61, 15, s60"); a("s_lshl_b32 s61, s61, 10")
        a("s_sub_i32 s62, 24, s60"); a("s_lshl_b32 s62, 1, s62")
        a("s_cmp_lt_i32 s60, 15"); a("s_cselect_b32 s61, s61, s62")
        a("s_cmp_gt_i32 s60, 24"); a("s_cselect_b32 s61, 0, s61")
        if n % 2 == 0: a("s_mov_b32 s63, s61")
        else: a(f"s_pack_ll_b32_b16 s{S_R + n // 2}, s63, s61")
    a("v_and_b32 v21, 32, v20"); a("v_lshrrev_b32 v21, 1, v21")
    a(f"v_mov_b32 v{V_T}, v21")
    a("s_mov_b32 s31, 0x01000100")
    emit_main(a, build_main(True, opt), True, "s")
    a.label("L2_end")
    a("s_endpgm")
```
